```python
import torch

def _softmax(x, axis=-1):
    return torch.softmax(x, dim=axis)

def _gelu(x):
    return torch.nn.functional.gelu(x, approximate='tanh')

def _silu(x):
    return torch.nn.functional.silu(x)

def _sigmoid(x):
    return torch.sigmoid(x)

def _layernorm(x, axis=-1, eps=1e-05):
    m = x.mean(dim=axis, keepdim=True)
    v = x.var(dim=axis, keepdim=True, unbiased=False)
    return (x - m) / torch.sqrt(v + eps)

def _scatter_add(tgt, idx, src, axis=0):
    return tgt.clone().index_add_(axis, idx, src)

def _segment_sum(src, seg, n):
    out = torch.zeros((n,) + src.shape[1:], dtype=src.dtype)
    return out.index_add_(0, seg, src)

def _pad(x, pw):
    flat = tuple((v for pair in reversed(pw) for v in pair))
    return torch.nn.functional.pad(x, flat)
kernel_name = 'recurrent_scan__sliding_block_cached__mixer_gmlp__prompt'

def setup_inputs():

    _w = lambda a: (lambda t: t.to(torch.bfloat16) if t.is_floating_point() else t)(torch.as_tensor(a))

    def _A_setup():
        B, Sq, D = (1, 2048, 1024)
        Hq, Hkv, Sk, Dh = (32, 4, 2048, 128)
        assert Hq % Hkv == 0, (Hq, Hkv)
        return {'x': _w((lambda *s: torch.randn(*s, dtype=torch.bfloat16) * 0.05)(B, Sq, D)), 'k_cache': _w((lambda *s: torch.randn(*s, dtype=torch.bfloat16) * 0.8)(B, Hkv, Sk, Dh)), 'v_cache': _w((lambda *s: torch.randn(*s, dtype=torch.bfloat16) * 0.2)(B, Hkv, Sk, Dh)), 'wq': _w((lambda *s: torch.randn(*s, dtype=torch.bfloat16) * 0.8)(D, Hq * Dh) * D ** (-0.5)), 'wo': _w((lambda *s: torch.randn(*s, dtype=torch.bfloat16) * 0.2)(Hq * Dh, D) * (Hq * Dh) ** (-0.5))}
    _A_in = _A_setup()

    def _B_setup():
        B, S, D, F = (1, 2048, 1024, 3584)
        Fh = F // 2
        return {'x': _w((lambda *s: torch.randn(*s, dtype=torch.bfloat16) * 0.05)(B, S, D)), 'w_in': _w((lambda *s: torch.randn(*s, dtype=torch.bfloat16) * 0.4)(D, 2 * Fh)), 'w_sp': _w(0.01 * (lambda *s: torch.randn(*s, dtype=torch.bfloat16) * 0.4)(S, S)), 'b_sp': _w(1.0 + 0.01 * (lambda *s: torch.randn(*s, dtype=torch.bfloat16) * 0.1)(S)), 'w_out': _w((lambda *s: torch.randn(*s, dtype=torch.bfloat16) * 0.1)(Fh, D))}
    _B_in = _B_setup()
    return {'A_x': _A_in['x'], 'A_k_cache': _A_in['k_cache'], 'A_v_cache': _A_in['v_cache'], 'A_wq': _A_in['wq'], 'A_wo': _A_in['wo'], 'B_x': _B_in['x'], 'B_w_in': _B_in['w_in'], 'B_w_sp': _B_in['w_sp'], 'B_b_sp': _B_in['b_sp'], 'B_w_out': _B_in['w_out']}

def reference(A_x, A_k_cache, A_v_cache, A_wq, A_wo, B_x, B_w_in, B_w_sp, B_b_sp, B_w_out):

    def _A_ref(x, k_cache, v_cache, wq, wo):
        B, Sq, D = x.shape
        Hq, Dh = (32, 128)
        Hkv, Sk = (k_cache.shape[1], k_cache.shape[2])
        W = min(4096, max(256, Sk // 4))
        rep = Hq // Hkv
        q = (lambda x, *d: x.permute(*d))((x @ wq).reshape(B, Sq, Hq, Dh), 0, 2, 1, 3)
        k = (lambda x, n, axis: torch.repeat_interleave(x, n, dim=axis))(k_cache[:, :, Sk - W:, :], rep, axis=1)
        v = (lambda x, n, axis: torch.repeat_interleave(x, n, dim=axis))(v_cache[:, :, Sk - W:, :], rep, axis=1)
        scores = torch.einsum('bhqd,bhkd->bhqk', q, k) * Dh ** (-0.5)
        p = _softmax(scores, axis=-1)
        o = torch.einsum('bhqk,bhkd->bhqd', p, v)
        return (lambda x, *d: x.permute(*d))(o, 0, 2, 1, 3).reshape(B, Sq, Hq * Dh) @ wo

    def _B_ref(x, w_in, w_sp, b_sp, w_out):
        B, S, D = x.shape
        F = w_in.shape[-1]
        Fh = F // 2
        z = _gelu(torch.einsum('bsd,df->bsf', x, w_in))
        z1 = z[..., :Fh].clone()
        z2 = _layernorm(z[..., Fh:], axis=-1)
        g = torch.einsum('ts,bsf->btf', w_sp, z2) + b_sp[None, :, None]
        return torch.einsum('bsf,fd->bsd', z1 * g, w_out)
    x = A_x
    xn = _layernorm(x, axis=-1)
    s = _A_ref(xn, A_k_cache, A_v_cache, A_wq, A_wo)
    g = _silu(_B_ref(xn, B_w_in, B_w_sp, B_b_sp, B_w_out))
    return x + s * g
```

```python
class Asm:
    def __init__(self):
        self.lines = []
    def __call__(self, s=""):
        for l in s.split("\n"):
            l = l.strip()
            if l == "": continue
            self.lines.append(l if l.endswith(":") or l.startswith(".") or l.startswith(";") else "    " + l)
    def ext(self, lst):
        for l in lst: self(l)
    def text(self):
        return "\n".join(self.lines) + "\n"

def vr(b, n=1):
    return "v%d" % b if n == 1 else "v[%d:%d]" % (b, b + n - 1)
def ar(b, n=1):
    return "a%d" % b if n == 1 else "a[%d:%d]" % (b, b + n - 1)
def sr(b, n=1):
    return "s%d" % b if n == 1 else "s[%d:%d]" % (b, b + n - 1)

def srd(a, d, base, nbytes, off=0):
    if off:
        a("s_add_u32 s%d, s%d, 0x%x" % (d, base, off))
        a("s_addc_u32 s%d, s%d, 0" % (d + 1, base + 1))
    else:
        a("s_mov_b32 s%d, s%d" % (d, base))
        a("s_mov_b32 s%d, s%d" % (d + 1, base + 1))
    a("s_mov_b32 s%d, 0x%x" % (d + 2, nbytes))
    a("s_mov_b32 s%d, 0x00020000" % (d + 3))

def interleave(mf, fill):
    out = []
    out += fill.get(-1, [])
    for i, m in enumerate(mf):
        out.append(m)
        out += fill.get(i, [])
    return out

def spread(items, gaps):
    d = {}
    n = len(items); g = len(gaps)
    for k, it in enumerate(items):
        gi = gaps[(k * g) // n]
        d.setdefault(gi, [])
        d[gi] += it if isinstance(it, list) else [it]
    return d

def merge(*ds):
    out = {}
    for d in ds:
        for k, v in d.items():
            out.setdefault(k, [])
            out[k] += v
    return out

def kernel_desc(name, vgpr, sgpr, accum):
    return """.amdhsa_kernel %s
  .amdhsa_next_free_vgpr %d
  .amdhsa_next_free_sgpr %d
  .amdhsa_accum_offset %d
  .amdhsa_group_segment_fixed_size 0
  .amdhsa_kernarg_size 104
  .amdhsa_user_sgpr_count 2
  .amdhsa_user_sgpr_kernarg_segment_ptr 1
  .amdhsa_system_sgpr_workgroup_id_x 1
.end_amdhsa_kernel
""" % (name, vgpr, sgpr, accum)

def kernel_head(a, name):
    a(".globl %s" % name)
    a(".p2align 8")
    a(".type %s,@function" % name)
    a("%s:" % name)
```

```python
from asmlib import *
import math, struct

WS_XN  = 0
WS_KV  = 4 << 20
WS_O   = 8 << 20
WS_Z1  = 24 << 20
WS_Z2  = 32 << 20
WS_H   = 40 << 20
WS_ST  = 48 << 20
WS_DBG = 64 << 20
WS_BYTES = 268435456

def f2u(x): return struct.unpack("<I", struct.pack("<f", x))[0]
QK_SCALE = (128 ** -0.5) * math.log2(math.e)

def bf16_round(a, v, tmp=None):
    a("v_cvt_pk_bf16_f32 v%d, v%d, v%d" % (v, v, v))
    a("v_and_b32 v%d, 0xffff0000, v%d" % (v, v))

def gen_k0(a, name="prep_kernel"):
    kernel_head(a, name)
    a("s_cmp_ge_u32 s2, 320")
    a("s_cbranch_scc1 L_k0_end")
    a("s_load_dwordx2 s[4:5], s[0:1], 0")
    a("s_load_dwordx4 s[8:11], s[0:1], 8")
    a("s_load_dwordx2 s[6:7], s[0:1], 96")
    a("v_and_b32 v1, 63, v0")
    a("v_lshrrev_b32 v2, 6, v0")
    a("s_waitcnt lgkmcnt(0)")
    a("s_cmp_ge_u32 s2, 256")
    a("s_cbranch_scc1 L_k0_kv")
    srd(a, 12, 4, 2048 * 1024 * 2)
    srd(a, 16, 6, 4 << 20, WS_XN)
    srd(a, 24, 6, 256 << 10, WS_ST)
    a("v_lshlrev_b32 v3, 2, v0")
    a("v_mov_b32 v4, -1")
    a("s_lshl_b32 s3, s2, 10")
    a("buffer_store_dword v4, v3, s[24:27], s3 offen")
    a("v_and_b32 v3, 7, v1")
    a("v_lshrrev_b32 v4, 3, v1")
    a("v_lshlrev_b32 v5, 11, v3")
    a("v_lshl_add_u32 v5, v4, 4, v5")
    a("v_lshl_add_u32 v5, v2, 9, v5")
    a("s_lshl_b32 s3, s2, 14")
    for i in range(4):
        a("buffer_load_dwordx4 v[%d:%d], v5, s[12:15], s3 offen offset:%d" % (8 + 4 * i, 11 + 4 * i, 128 * i))
    a("v_lshrrev_b32 v6, 2, v4")
    a("v_lshl_add_u32 v6, v2, 3, v6")
    a("v_lshlrev_b32 v6, 14, v6")
    a("v_and_b32 v7, 3, v4")
    a("v_lshl_add_u32 v6, v7, 9, v6")
    a("v_lshl_add_u32 v6, v3, 4, v6")
    a("s_lshr_b32 s20, s2, 5")
    a("s_lshl_b32 s20, s20, 19")
    a("s_bfe_u32 s21, s2, 0x30002")
    a("s_lshl_b32 s21, s21, 11")
    a("s_add_u32 s20, s20, s21")
    a("s_and_b32 s21, s2, 3")
    a("s_lshl_b32 s21, s21, 7")
    a("s_add_u32 s20, s20, s21")
    a("s_add_u32 s21, s20, 0x8000")
    a("s_add_u32 s22, s20, 0x10000")
    a("s_add_u32 s23, s20, 0x18000")
    a("v_lshlrev_b32 v62, 3, v3")
    a("v_lshl_add_u32 v63, v2, 6, v62")
    a("v_mov_b32 v60, 0")
    a("v_mov_b32 v61, 0")
    for i in range(4):
        a("s_waitcnt vmcnt(%d)" % (3 - i))
        for r in range(4):
            src = 8 + 4 * i + r; d = 24 + 8 * i + 2 * r
            a("v_lshlrev_b32 v%d, 16, v%d" % (d, src))
            a("v_and_b32 v%d, 0xffff0000, v%d" % (d + 1, src))
            a("v_add_f32 v60, v60, v%d" % d)
            a("v_fmac_f32 v61, v%d, v%d" % (d, d))
            a("v_add_f32 v60, v60, v%d" % (d + 1))
            a("v_fmac_f32 v61, v%d, v%d" % (d + 1, d + 1))
    a("s_nop 1")
    a("v_add_f32_dpp v60, v60, v60 row_ror:8 row_mask:0xf bank_mask:0xf")
    a("v_add_f32_dpp v61, v61, v61 row_ror:8 row_mask:0xf bank_mask:0xf")
    for sw in ("v_permlane16_swap_b32", "v_permlane32_swap_b32"):
        a("v_mov_b32 v58, v60")
        a("v_mov_b32 v59, v61")
        a("s_nop 1")
        a("%s v60, v58" % sw)
        a("%s v61, v59" % sw)
        a("s_nop 1")
        a("v_add_f32 v60, v60, v58")
        a("v_add_f32 v61, v61, v59")
    a("ds_write_b64 v63, v[60:61]")
    a("s_waitcnt lgkmcnt(0)")
    a("s_barrier")
    for w in range(4):
        a("ds_read_b64 v[%d:%d], v62 offset:%d" % (8 + 2 * w, 9 + 2 * w, 64 * w))
    a("s_waitcnt lgkmcnt(0)")
    a("v_add_f32 v8, v8, v10"); a("v_add_f32 v9, v9, v11")
    a("v_add_f32 v12, v12, v14"); a("v_add_f32 v13, v13, v15")
    a("v_add_f32 v8, v8, v12"); a("v_add_f32 v9, v9, v13")
    a("v_mul_f32 v8, 0x%x, v8" % f2u(1 / 1024))
    a("v_mul_f32 v9, 0x%x, v9" % f2u(1 / 1024))
    a("v_fma_f32 v9, -v8, v8, v9")
    a("v_max_f32 v9, 0, v9")
    bf16_round(a, 8); bf16_round(a, 9)
    a("v_add_f32 v9, 0x%x, v9" % f2u(1e-5))
    bf16_round(a, 9)
    a("v_sqrt_f32 v9, v9")
    a("s_nop 0")
    bf16_round(a, 9)
    a("v_rcp_f32 v9, v9")
    a("s_nop 0")
    for i in range(4):
        for r in range(4):
            d = 24 + 8 * i + 2 * r
            a("v_sub_f32 v%d, v%d, v8" % (d, d))
            a("v_sub_f32 v%d, v%d, v8" % (d + 1, d + 1))
            a("v_cvt_pk_bf16_f32 v%d, v%d, v%d" % (d + 1, d, d + 1))
            a("v_lshlrev_b32 v%d, 16, v%d" % (d, d + 1))
            a("v_and_b32 v%d, 0xffff0000, v%d" % (d + 1, d + 1))
            a("v_mul_f32 v%d, v%d, v9" % (d, d))
            a("v_mul_f32 v%d, v%d, v9" % (d + 1, d + 1))
            a("v_cvt_pk_bf16_f32 v%d, v%d, v%d" % (12 + 4 * (i & 1) + r, d, d + 1))
        o = 12 + 4 * (i & 1)
        a("buffer_store_dwordx4 v[%d:%d], v6, s[16:19], s%d offen" % (o, o + 3, 20 + i))
        a("s_nop 1")
    a("s_endpgm")
    a("L_k0_kv:")
    srd(a, 12, 8, 4 * 2048 * 128 * 2)
    srd(a, 16, 10, 4 * 2048 * 128 * 2)
    srd(a, 24, 6, 1 << 20, WS_KV)
    a("s_sub_u32 s3, s2, 256")
    srd(a, 28, 6, 4096, WS_ST + (256 << 10))
    a("v_lshlrev_b32 v3, 2, v0")
    a("v_mov_b32 v4, 0")
    a("s_lshl_b32 s20, s3, 10")
    a("buffer_store_dword v4, v3, s[28:31], s20 offen")
    a("s_lshr_b32 s20, s3, 4")
    a("s_and_b32 s21, s3, 15")
    a("s_lshl_b32 s20, s20, 19")
    a("s_lshl_b32 s21, s21, 13")
    a("s_add_u32 s20, s20, s21")
    a("s_add_u32 s20, s20, %d" % (1536 * 256))
    a("s_lshl_b32 s21, s3, 14")
    a("v_and_b32 v3, 31, v1")
    a("v_lshrrev_b32 v4, 5, v1")
    a("v_lshlrev_b32 v5, 8, v3")
    a("v_lshl_add_u32 v5, v4, 4, v5")
    a("v_lshl_add_u32 v5, v2, 6, v5")
    a("buffer_load_dwordx4 v[8:11], v5, s[12:15], s20 offen")
    a("buffer_load_dwordx4 v[12:15], v5, s[12:15], s20 offen offset:32")
    a("v_lshrrev_b32 v6, 2, v3")
    a("v_and_b32 v7, 1, v6")
    a("v_bfe_u32 v16, v6, 1, 1")
    a("v_lshlrev_b32 v7, 3, v7")
    a("v_lshl_add_u32 v7, v16, 2, v7")
    a("v_and_b32 v16, 0x13, v3")
    a("v_add_u32 v7, v7, v16")
    a("v_lshl_add_u32 v7, v2, 5, v7")
    a("v_lshlrev_b32 v7, 1, v7")
    a("v_lshl_add_u32 v7, v4, 10, v7")
    a("v_add_u32 v17, 0x1000, v7")
    for sp in range(2):
        for i in range(8):
            a("buffer_load_ushort v%d, v%d, s[16:19], s20 offen offset:%d" %
              (24 + 8 * sp + i, 7 if sp == 0 else 17, ((i >> 2) * 8 + (i & 3)) * 256))
    a("v_lshlrev_b32 v18, 4, v1")
    a("v_lshl_add_u32 v18, v2, 11, v18")
    a("s_mov_b32 s22, 0x%x" % f2u(QK_SCALE))
    a("s_waitcnt vmcnt(16)")
    for r in range(8):
        a("v_lshlrev_b32 v20, 16, v%d" % (8 + r))
        a("v_and_b32 v21, 0xffff0000, v%d" % (8 + r))
        a("v_mul_f32 v20, s22, v20")
        a("v_mul_f32 v21, s22, v21")
        a("v_cvt_pk_bf16_f32 v%d, v20, v21" % (8 + r))
    a("buffer_store_dwordx4 v[8:11], v18, s[24:27], s21 offen")
    a("buffer_store_dwordx4 v[12:15], v18, s[24:27], s21 offen offset:1024")
    a("s_waitcnt vmcnt(2)")
    for sp in range(2):
        for r in range(4):
            a("v_lshl_or_b32 v%d, v%d, 16, v%d" % (40 + 4 * sp + r, 24 + 8 * sp + 2 * r + 1, 24 + 8 * sp + 2 * r))
    a("s_add_u32 s21, s21, 0x2000")
    a("buffer_store_dwordx4 v[40:43], v18, s[24:27], s21 offen")
    a("buffer_store_dwordx4 v[44:47], v18, s[24:27], s21 offen offset:1024")
    a("L_k0_end:")
    a("s_endpgm")
    return kernel_desc(name, 64, 40, 64), "; @launch kernel=%s grid=(320,1,1) block=(256,1,1) lds=256" % name
```

```python
from asmlib import *
from k0 import *

REG = 4416
QST = 1056
WSLOT = 4 * REG
XSLOT = 16384
A_WBASE = 4 * XSLOT
K1_LDS = A_WBASE + 4 * WSLOT
flat = lambda ll: [x for l in ll for x in l]

def mf16(d, A, B, c=None, acc="a"):
    D = "%s[%d:%d]" % (acc, d, d + 3)
    return "v_mfma_f32_16x16x32_bf16 %s, %s, %s, %s" % (D, A, B, D if c is None else c)
def mf32(d, A, B, c=None, acc="a"):
    D = "%s[%d:%d]" % (acc, d, d + 15)
    return "v_mfma_f32_32x32x16_bf16 %s, %s, %s, %s" % (D, A, B, D if c is None else c)

def zig(ni, nj):
    seq = []
    for i2 in range(0, ni, 2):
        js = range(nj) if (i2 // 2) % 2 == 0 else range(nj - 1, -1, -1)
        if i2 + 1 < ni:
            for n, j in enumerate(js):
                seq += [(i2, j), (i2 + 1, j)] if n % 2 == 0 else [(i2 + 1, j), (i2, j)]
        else:
            seq += [(i2, j) for j in js]
    return seq

def w_read_addr(a, dst, tmp, base, wn_shift_bytes=None):
    a("v_bfe_u32 v%d, v1, 2, 2" % tmp)
    a("v_mul_u32_u24 v%d, %d, v%d" % (dst, REG, tmp))
    a("v_lshrrev_b32 v%d, 4, v1" % tmp)
    a("v_mul_u32_u24 v%d, %d, v%d" % (tmp, QST, tmp))
    a("v_add_u32 v%d, v%d, v%d" % (dst, dst, tmp))
    if wn_shift_bytes:
        a("v_and_b32 v%d, 1, v2" % tmp)
        a("v_mul_u32_u24 v%d, %d, v%d" % (tmp, wn_shift_bytes, tmp))
        a("v_add_u32 v%d, v%d, v%d" % (dst, dst, tmp))
    a("v_and_b32 v%d, 3, v1" % tmp)
    a("v_lshl_add_u32 v%d, v%d, 3, v%d" % (dst, tmp, dst))
    if base: a("v_add_u32 v%d, %d, v%d" % (dst, base, dst))

def stamp(a, idx, v):
    if v.get("stamps"):
        a("s_memtime s[%d:%d]" % (64 + 4 * idx, 65 + 4 * idx))
        a("s_memrealtime s[%d:%d]" % (66 + 4 * idx, 67 + 4 * idx))

def stamps_out(a, v, n, lbl, area=48):
    if not v.get("stamps"): return
    a("s_cmp_lg_u32 s10, 0")
    a("s_cbranch_scc1 %s" % lbl)
    srd(a, 56, 8, 64 << 20, WS_DBG)
    a("s_waitcnt lgkmcnt(0)")
    a("s_lshl_b32 s3, s2, 7")
    a("s_add_u32 s3, s3, %d" % (area << 20))
    a("v_mov_b32 v3, 0")
    a("s_mov_b64 exec, 1")
    for i in range(n):
        for r in range(4): a("v_mov_b32 v%d, s%d" % (16 + r, 64 + 4 * i + r))
        a("buffer_store_dwordx4 v[16:19], v3, s[56:59], s3 offen offset:%d" % (16 * i))
        a("s_nop 1")
    a("%s:" % lbl)

def gen_a_path(a, v):
    srd(a, 16, 4, 1024 * 4096 * 2)
    srd(a, 20, 8, 4 << 20, WS_XN)
    srd(a, 24, 8, 1 << 20, WS_KV)
    srd(a, 28, 8, 16 << 20, WS_O)
    STR = 8192
    a("v_lshrrev_b32 v3, 5, v1")
    a("v_lshl_add_u32 v3, v3, 2, v2")
    a("v_lshlrev_b32 v4, 13, v3")
    a("v_and_b32 v3, 31, v1")
    a("v_lshl_add_u32 v4, v3, 4, v4")
    a("s_lshl_b32 s15, s14, 9")
    a("v_add_u32 v4, s15, v4")
    for q in range(1, 4):
        a("v_add_u32 v%d, 0x%x, v%d" % (4 + q, 8 * STR - QST, 3 + q))
    a("v_lshlrev_b32 v11, 4, v1")
    a("v_lshl_add_u32 v8, v2, 12, v11")
    a("s_mov_b32 s32, 0")
    a("s_lshl_b32 s33, s13, 19")
    a("s_mul_i32 s35, s10, %d" % REG)
    a("s_add_u32 s35, s35, %d" % A_WBASE)
    a("s_lshl_b32 s36, s10, 12")
    a("s_lshr_b32 s34, s14, 2")
    a("s_lshl_b32 s34, s34, 18")

    def dmaW(slot, loop=False):
        l = [["s_add_u32 m0, s35, %d" % (slot * WSLOT)] + ([] if loop else ["s_nop 0"]),
             ["buffer_load_dwordx4 v4, s[16:19], s32 offen lds"]]
        for q in range(1, 4):
            l.append(["buffer_load_dwordx4 v%d, s[16:19], s32 offen offset:%d lds" % (4 + q, QST * q)])
        l.append(["s_add_u32 s32, s32, 0x%x" % (32 * STR)])
        return l
    def dmaX(slot, loop=False, kv=False):
        sd, so = ("s[24:27]", "s34") if kv else ("s[20:23]", "s33")
        l = [["s_add_u32 m0, s36, %d" % (slot * XSLOT)] + ([] if loop else ["s_nop 0"]),
             ["buffer_load_dwordx4 v8, %s, %s offen lds" % (sd, so)]]
        for q in range(1, 4):
            l.append(["buffer_load_dwordx4 v8, %s, %s offen offset:%d lds" % (sd, so, 1024 * q)])
        l.append(["s_add_u32 %s, %s, 0x4000" % (so, so)])
        return l
    for t in range(4):
        a.ext(flat(dmaW(t))); a.ext(flat(dmaX(t)))
    w_read_addr(a, 9, 3, A_WBASE, 256)
    a("v_and_b32 v10, 15, v1")
    a("v_lshlrev_b32 v10, 4, v10")
    a("v_lshrrev_b32 v3, 4, v1")
    a("v_lshl_add_u32 v10, v3, 9, v10")
    a("v_lshrrev_b32 v3, 1, v2")
    a("v_lshl_add_u32 v10, v3, 13, v10")
    FA = [16, 80]; FB = [48, 112]
    qacc = lambda i, j: (j >> 1) * 64 + (i * 2 + (j & 1)) * 4
    def reads(slot, st):
        ra = lambda i, sec: "ds_read_b64_tr_b16 v[%d:%d], v9 offset:%d" % (
            FA[st] + 4 * i + 2 * sec, FA[st] + 4 * i + 2 * sec + 1, slot * WSLOT + sec * 512 + i * 32)
        rb = lambda j: "ds_read_b128 v[%d:%d], v10 offset:%d" % (
            FB[st] + 4 * j, FB[st] + 4 * j + 3, slot * XSLOT + (j >> 1) * 2048 + (j & 1) * 256)
        l = [ra(0, 0), ra(0, 1), ra(1, 0), ra(1, 1)] + [rb(j) for j in range(8)]
        for i in range(2, 8): l += [ra(i, 0), ra(i, 1)]
        return l
    def mfmas(st, first=False):
        return [mf16(qacc(i, j), vr(FA[st] + 4 * i, 4), vr(FB[st] + 4 * j, 4), "0" if first else None) for i, j in zig(8, 8)]
    KR, VR_, S0, P0, QB, LS = 16, 48, [80, 96], [112, 120], 128, 12
    kreads = lambda: ["ds_read_b128 v[%d:%d], v11 offset:%d" % (KR + 4 * ks, KR + 4 * ks + 3, ks * 1024) for ks in range(8)]
    vreads = lambda: ["ds_read_b128 v[%d:%d], v11 offset:%d" % (VR_ + 4 * (dt * 2 + sp), VR_ + 4 * (dt * 2 + sp) + 3,
                      8192 + (dt * 2 + sp) * 1024) for sp in range(2) for dt in range(4)]
    a("s_waitcnt vmcnt(24)")
    a("s_barrier")
    a.ext(reads(0, 0))
    stamp(a, 1, v)
    rg = list(range(0, 48, 2))
    dg = [1, 3, 9, 15, 21, 23, 27, 29, 35, 41, 47, 49]
    def slot_body(s, dma, vm, rd=None, first=False):
        out = ["s_waitcnt vmcnt(%d) lgkmcnt(0)" % vm, "s_barrier"]
        f = spread(rd if rd is not None else reads((s + 1) & 3, (s + 1) & 1), rg)
        if dma: f = merge(f, spread(dma, dg[:len(dma)]))
        return out + interleave(mfmas(s & 1, first), f)
    full = lambda s: dmaW(s, True) + dmaX(s, True)
    a.ext(slot_body(0, full(0), 16, first=True))
    for s in range(1, 4): a.ext(slot_body(s, full(s), 16))
    a("s_mov_b32 s37, 6")
    a(".p2align 6")
    a("L_a_qloop:")
    for s in range(4): a.ext(slot_body(s, full(s), 16))
    a("s_sub_u32 s37, s37, 1")
    a("s_cmp_lg_u32 s37, 0")
    a("s_cbranch_scc1 L_a_qloop")
    a.ext(slot_body(0, dmaX(0, True, True), 16))
    a.ext(slot_body(1, dmaX(1, True, True), 12))
    a.ext(slot_body(2, dmaX(2, True, True), 8))
    a.ext(slot_body(3, None, 8, rd=kreads() + vreads()))
    stamp(a, 2, v)
    qf = lambda jp, i: QB + (jp * 8 + i) * 4
    for r in range(4): a("v_mov_b32 v%d, 0" % (LS + r))
    a("v_add_u32 v11, 0x4000, v11")
    a("s_nop 7")
    pend = []
    n = 0
    for jp in range(4):
        for i in range(8):
            t = 80 + 8 * (n & 1); F = qf(jp, i); n += 1
            for r in range(8): a("v_accvgpr_read_b32 v%d, a%d" % (t + r, jp * 64 + i * 8 + r))
            a.ext(pend)
            for r in range(4): a("v_cvt_pk_bf16_f32 v%d, v%d, v%d" % (F + r, t + 2 * r, t + 2 * r + 1))
            pend = ["v_permlane16_swap_b32 v%d, v%d" % (F, F + 2), "v_permlane16_swap_b32 v%d, v%d" % (F + 1, F + 3)]
    a("s_nop 1")
    a.ext(pend)
    a("s_waitcnt lgkmcnt(0)")
    a("s_nop 1")
    stamp(a, 3, v)
    def QK(qg):
        return [mf32(S0[qg & 1], vr(KR + 4 * ks, 4), vr(qf(qg, ks), 4), "0" if ks == 0 else None, "v") for ks in range(8)]
    def PV(qg, first=False):
        return [mf32(qg * 64 + dt * 16, vr(VR_ + 4 * (dt * 2 + sp), 4), vr(P0[qg & 1] + 4 * sp, 4),
                     "0" if (first and sp == 0) else None) for sp in range(2) for dt in range(4)]
    def softmax_ops(qg):
        S = S0[qg & 1]; P = P0[qg & 1]; ops = []
        for k in range(0, 16, 2):
            ops += [("v_exp_f32 v%d, v%d" % (S + k, S + k), 8), ("v_exp_f32 v%d, v%d" % (S + k + 1, S + k + 1), 8),
                    ("v_add_f32 v%d, v%d, v%d" % (LS + qg, LS + qg, S + k), 4),
                    ("v_add_f32 v%d, v%d, v%d" % (LS + qg, LS + qg, S + k + 1), 4),
                    ("v_cvt_pk_bf16_f32 v%d, v%d, v%d" % (P + k // 2, S + k, S + k + 1), 4)]
        return ops
    CAP = v.get("cap", 20)
    def place(ops, gaps):
        d = {}; gi = 0; used = 0
        for s, c in ops:
            if used + c > CAP and gi + 1 < len(gaps):
                gi += 1; used = 0
            d.setdefault(gaps[gi], []).append(s); used += c
        return d
    def slab_body(first=False, last=False):
        blocks = [QK(1), PV(0, first), QK(2), PV(1, first), QK(3), PV(2, first), [] if last else QK(0), PV(3, first)]
        fill = [dict() for _ in range(8)]
        def add(d):
            for (b, g), l in d.items(): fill[b].setdefault(g, []); fill[b][g] += l
        so = softmax_ops(0)
        g_pv = lambda b: [(b, g) for g in range(2, 8)]
        g_qk = lambda b: [(b, g) for g in range(0, 7)]
        d0 = place(so, g_pv(7) + g_qk(0))
        add({k: l for k, l in d0.items() if k[0] == 0})
        add(place(softmax_ops(1), g_pv(1) + g_qk(2)))
        add(place(softmax_ops(2), g_pv(3) + g_qk(4)))
        if not last:
            add(place(softmax_ops(3), g_pv(5) + g_qk(6)))
            add({k: l for k, l in d0.items() if k[0] == 7})
            for g, s in enumerate(kreads()): fill[4].setdefault(g, []).insert(0, s)
            for g, s in enumerate(vreads()): fill[7].setdefault(g, []).insert(0, s)
            fill[5].setdefault(7, []).append("s_waitcnt lgkmcnt(0)")
            dm = [["s_add_u32 m0, s36, s38"], ["buffer_load_dwordx4 v8, s[24:27], s34 offen lds"]]
            dm += [["buffer_load_dwordx4 v8, s[24:27], s34 offen offset:%d lds" % (1024 * q)] for q in range(1, 4)]
            dm += [["s_add_u32 s34, s34, 0x4000", "s_add_u32 s38, s38, 0x4000", "s_and_b32 s38, s38, 0xffff"]]
            for (b, g), l in zip([(1, 0), (1, 1), (3, 0), (3, 1), (5, 0), (5, 1)], dm):
                fill[b].setdefault(g, []); fill[b][g] += l
        else:
            fill[5].setdefault(7, [])
            fill[5][7] += ["s_nop 7"] + [s for s, c in softmax_ops(3)] + ["s_nop 1"]
        if not first:
            fill[0].setdefault(7, []).append("s_waitcnt lgkmcnt(0)")
            if not last:
                fill[1].setdefault(0, []).insert(0, "v_add_u32 v11, 0x4000, v11")
                fill[1].setdefault(1, []).insert(0, "v_and_b32 v11, 0xffff, v11")
        out = [] if last else ["s_waitcnt vmcnt(4)", "s_barrier"]
        for b in range(8): out += interleave(blocks[b], fill[b])
        return out, [l for k, l in sorted(d0.items()) if k[0] == 7]
    a("s_mov_b32 s38, 0xc000")
    body0, pre = slab_body(first=True)
    a.ext(QK(0))
    a("s_nop 15")
    a.ext(flat(pre))
    a.ext(body0)
    a("s_mov_b32 s37, 14")
    a(".p2align 6")
    a("L_a_aloop:")
    a.ext(slab_body()[0])
    a("s_sub_u32 s37, s37, 1")
    a("s_cmp_lg_u32 s37, 0")
    a("s_cbranch_scc1 L_a_aloop")
    a.ext(slab_body(last=True)[0])
    stamp(a, 4, v)
    for q in range(4): a("v_mov_b32 v%d, v%d" % (16 + q, LS + q))
    a("s_nop 1")
    for q in range(4): a("v_permlane32_swap_b32 v%d, v%d" % (LS + q, 16 + q))
    a("s_nop 1")
    for q in range(4): a("v_add_f32 v%d, v%d, v%d" % (LS + q, LS + q, 16 + q))
    if not v.get("nofallback"):
        a("v_min3_f32 v16, v12, v13, v14")
        a("v_max3_f32 v17, v12, v13, v14")
        a("v_min_f32 v16, v16, v15")
        a("v_max_f32 v17, v17, v15")
        a("v_add_f32 v18, v12, v13")
        a("v_add_f32 v19, v14, v15")
        a("v_add_f32 v18, v18, v19")
        a("v_cmp_gt_f32 vcc, 0x%x, v16" % f2u(2.0 ** (v.get("lo", -64))))
        a("s_mov_b64 s[40:41], vcc")
        a("v_cmp_lt_f32 vcc, 0x%x, v17" % f2u(2.0 ** (v.get("hi", 64))))
        a("s_or_b64 s[40:41], s[40:41], vcc")
        a("v_cmp_u_f32 vcc, v18, v18")
        a("s_or_b64 s[40:41], s[40:41], vcc")
        a("s_cmp_lg_u64 s[40:41], 0")
        a("s_cbranch_scc1 L_a_fallback")
    a("L_a_final:")
    for q in range(4): a("v_rcp_f32 v%d, v%d" % (16 + 2 * q, LS + q))
    a("s_lshr_b32 s40, s10, 1")
    a("s_lshl_b32 s40, s40, 2")
    a("s_lshl_b32 s41, s13, 3")
    a("s_add_u32 s40, s40, s41")
    a("s_lshl_b32 s40, s40, 18")
    a("s_and_b32 s41, s10, 1")
    a("s_lshl_b32 s42, s14, 1")
    a("s_add_u32 s41, s41, s42")
    a("s_lshl_b32 s41, s41, 13")
    a("s_add_u32 s40, s40, s41")
    a("v_lshlrev_b32 v3, 4, v1")
    n = 0
    for qg in range(4):
        for f in range(8):
            t = 32 + 16 * (n % 3); n += 1
            for r in range(8): a("v_accvgpr_read_b32 v%d, a%d" % (t + r, qg * 64 + f * 8 + r))
            for r in range(4):
                a("v_pk_mul_f32 v[%d:%d], v[%d:%d], v[%d:%d] op_sel_hi:[1,0]" % (t + 2 * r, t + 2 * r + 1, t + 2 * r, t + 2 * r + 1, 16 + 2 * qg, 17 + 2 * qg))
            for r in range(4): a("v_cvt_pk_bf16_f32 v%d, v%d, v%d" % (t + 8 + r, t + 2 * r, t + 2 * r + 1))
            a("buffer_store_dwordx4 v[%d:%d], v3, s[28:31], s40 offen offset:%d" % (t + 8, t + 11, 1024 * (f & 3)))
            if f == 3: a("s_add_u32 s40, s40, 4096")
            if f == 7: a("s_add_u32 s40, s40, %d" % (262144 - 4096))
    if v.get("stamps"): a("s_waitcnt vmcnt(0)")
    stamp(a, 5, v)
    stamps_out(a, v, 6, "L_a_st")
    a("s_endpgm")
    if v.get("nofallback"): return
    a("L_a_fallback:")
    a("v_lshlrev_b32 v3, 4, v1")
    a("s_lshr_b32 s34, s14, 2")
    a("s_lshl_b32 s34, s34, 18")
    MX = 112
    for q in range(4): a("v_mov_b32 v%d, 0xff800000" % (MX + q))
    a("s_waitcnt vmcnt(0)")
    a("s_mov_b32 s37, 0")
    def kload(so):
        for ks in range(8):
            if ks == 4: a("s_add_u32 s39, %s, 4096" % so)
            a("buffer_load_dwordx4 v[%d:%d], v3, s[24:27], %s offen offset:%d" % (KR + 4 * ks, KR + 4 * ks + 3, so if ks < 4 else "s39", 1024 * (ks & 3)))
    a("L_a_fb1:")
    a("s_add_u32 s38, s34, s37")
    kload("s38")
    a("s_waitcnt vmcnt(0)")
    for qg in range(4):
        a.ext(QK(qg))
        a("s_nop 15")
        S = S0[qg & 1]
        for k in range(0, 16, 2): a("v_max3_f32 v%d, v%d, v%d, v%d" % (MX + qg, MX + qg, S + k, S + k + 1))
        a("s_nop 1")
    a("s_add_u32 s37, s37, 0x4000")
    a("s_cmp_lg_u32 s37, 0x40000")
    a("s_cbranch_scc1 L_a_fb1")
    for q in range(4): a("v_mov_b32 v%d, v%d" % (MX + 4 + q, MX + q))
    a("s_nop 1")
    for q in range(4): a("v_permlane32_swap_b32 v%d, v%d" % (MX + q, MX + 4 + q))
    a("s_nop 1")
    for q in range(4): a("v_max_f32 v%d, v%d, v%d" % (4 + q, MX + q, MX + 4 + q))
    for q in range(4): a("v_mov_b32 v%d, 0" % (LS + q))
    for r in range(256): a("v_accvgpr_write_b32 a%d, 0" % r)
    a("s_mov_b32 s37, 0")
    a("L_a_fb2:")
    a("s_add_u32 s38, s34, s37")
    kload("s38")
    for f in range(8):
        if f % 4 == 0: a("s_add_u32 s39, s38, %d" % (8192 + 1024 * f))
        a("buffer_load_dwordx4 v[%d:%d], v3, s[24:27], s39 offen offset:%d" % (VR_ + 4 * f, VR_ + 4 * f + 3, 1024 * (f & 3)))
    a("s_waitcnt vmcnt(0)")
    for qg in range(4):
        a.ext(QK(qg))
        a("s_nop 15")
        S = S0[qg & 1]
        for k in range(16): a("v_sub_f32 v%d, v%d, v%d" % (S + k, S + k, 4 + qg))
        a.ext([s for s, c in softmax_ops(qg)])
        a("s_nop 1")
        a.ext(PV(qg))
    a("s_add_u32 s37, s37, 0x4000")
    a("s_cmp_lg_u32 s37, 0x40000")
    a("s_cbranch_scc1 L_a_fb2")
    for q in range(4): a("v_mov_b32 v%d, v%d" % (16 + q, LS + q))
    a("s_nop 1")
    for q in range(4): a("v_permlane32_swap_b32 v%d, v%d" % (LS + q, 16 + q))
    a("s_nop 1")
    for q in range(4): a("v_add_f32 v%d, v%d, v%d" % (LS + q, LS + q, 16 + q))
    a("s_nop 7")
    a("s_branch L_a_final")
```

```python
from asmlib import *
from k0 import *
from k1a import *
import math

ST_STATS = WS_ST
ST_FLAGS = WS_ST + (256 << 10)
ZSTAGE = 28672
GELU_C1 = -2.0 * math.sqrt(2.0 / math.pi) * math.log2(math.e)
GELU_C2 = GELU_C1 * 0.044715
POLL_MAX = 1 << 16

def gelu_tile(x, t, acc, stats=None):
    P = lambda r: "v[%d:%d]" % (r, r + 1)
    o = ["v_accvgpr_read_b32 v%d, a%d" % (x + r, acc + r) for r in range(4)]
    for h in (0, 2): o.append("v_pk_mul_f32 %s, %s, %s" % (P(t + h), P(x + h), P(x + h)))
    for h in (0, 2): o.append("v_pk_fma_f32 %s, %s, s[60:61], s[60:61] op_sel:[0,0,1] op_sel_hi:[1,0,1]" % (P(t + h), P(t + h)))
    for h in (0, 2): o.append("v_pk_mul_f32 %s, %s, %s" % (P(t + h), P(t + h), P(x + h)))
    for r in range(4): o.append("v_exp_f32 v%d, v%d" % (t + r, t + r))
    for h in (0, 2): o.append("v_pk_add_f32 %s, %s, 1.0 op_sel_hi:[1,0]" % (P(t + h), P(t + h)))
    for r in range(4): o.append("v_rcp_f32 v%d, v%d" % (t + r, t + r))
    for h in (0, 2): o.append("v_pk_mul_f32 %s, %s, %s" % (P(x + h), P(x + h), P(t + h)))
    if stats is not None:
        for h in (0, 2):
            o.append("v_pk_add_f32 %s, %s, %s" % (P(stats), P(stats), P(x + h)))
            o.append("v_pk_fma_f32 %s, %s, %s, %s" % (P(stats + 2), P(x + h), P(x + h), P(stats + 2)))
    return o

def gen_b_path(a, v):
    a("s_load_dwordx4 s[40:43], s[0:1], 56")
    srd(a, 16, 6, 1024 * 3584 * 2)
    srd(a, 20, 8, 4 << 20, WS_XN)
    STR = 7168
    a("v_lshrrev_b32 v3, 5, v1")
    a("v_lshl_add_u32 v3, v3, 2, v2")
    a("v_mul_u32_u24 v4, %d, v3" % STR)
    a("v_and_b32 v3, 31, v1")
    a("v_lshl_add_u32 v4, v3, 4, v4")
    a("s_mul_i32 s15, s14, 224")
    a("v_add_u32 v4, s15, v4")
    a("v_add_u32 v5, %d, v4" % (3584 - 224))
    a("v_cmp_lt_u32 vcc, 13, v3")
    a("s_nop 1")
    a("v_cndmask_b32 v4, v4, v5, vcc")
    a("v_mov_b32 v5, 0x40000000")
    a("v_cmp_lt_u32 vcc, 27, v3")
    a("s_nop 1")
    a("v_cndmask_b32 v4, v4, v5, vcc")
    for q in range(1, 4):
        a("v_add_u32 v%d, 0x%x, v%d" % (4 + q, 8 * STR - QST, 3 + q))
    a("v_and_b32 v8, 15, v1")
    a("v_lshlrev_b32 v8, 4, v8")
    a("v_lshrrev_b32 v3, 4, v1")
    a("v_lshl_add_u32 v8, v3, 9, v8")
    a("v_lshl_add_u32 v8, v2, 12, v8")
    a("s_mov_b32 s32, 0")
    a("s_lshl_b32 s33, s13, 19")
    a("s_mul_i32 s35, s10, %d" % REG)
    FA = [16, 72]; FB = [128, 144, 160, 176]
    def dmaW(slot, loop=False):
        l = [["s_add_u32 m0, s35, %d" % (slot * WSLOT)] + ([] if loop else ["s_nop 0"]),
             ["buffer_load_dwordx4 v4, s[16:19], s32 offen lds"]]
        for q in range(1, 4):
            l.append(["buffer_load_dwordx4 v%d, s[16:19], s32 offen offset:%d lds" % (4 + q, QST * q)])
        l.append(["s_add_u32 s32, s32, 0x%x" % (32 * STR)])
        return l
    def ldX(st):
        l = [["buffer_load_dwordx4 v[%d:%d], v8, s[20:23], s33 offen offset:%d" % (
            FB[st] + 4 * j, FB[st] + 4 * j + 3, (j >> 1) * 2048 + (j & 1) * 256)] for j in range(4)]
        l.append(["s_add_u32 s33, s33, 0x4000"])
        return l
    a.ext(flat(dmaW(0)))
    for t in range(3):
        a.ext(flat(ldX(t))); a.ext(flat(dmaW(t + 1)))
    w_read_addr(a, 9, 3, 0)
    a("s_waitcnt lgkmcnt(0)")
    srd(a, 44, 40, 2048 * 2048 * 2)
    srd(a, 52, 42, 4096)
    srd(a, 24, 8, 7 << 20, WS_Z2)
    srd(a, 28, 8, 7 << 20, WS_H)
    srd(a, 48, 8, (256 << 10) + 2048, ST_STATS)
    a("s_mov_b32 s60, 0x%x" % f2u(GELU_C2))
    a("s_mov_b32 s61, 0x%x" % f2u(GELU_C1))
    zacc = lambda i, j: (i * 4 + j) * 4
    def reads(slot, st):
        return ["ds_read_b64_tr_b16 v[%d:%d], v9 offset:%d" % (
            FA[st] + 4 * i + 2 * sec, FA[st] + 4 * i + 2 * sec + 1, slot * WSLOT + sec * 512 + i * 32)
            for i in range(14) for sec in range(2)]
    def mfmas(s, first=False):
        return [mf16(zacc(i, j), vr(FA[s & 1] + 4 * i, 4), vr(FB[s & 3] + 4 * j, 4), "0" if first else None) for i, j in zig(14, 4)]
    a("s_waitcnt vmcnt(24)")
    a("s_barrier")
    a.ext(reads(0, 0))
    stamp(a, 1, v)
    rg = [g for g in range(0, 42) if g % 3 != 2]
    dg = [2, 8, 14, 20, 23, 26, 29, 32, 38, 41, 44]
    def slot_body(s, dma, vm, last=False, first=False):
        out = ["s_waitcnt vmcnt(%d) lgkmcnt(0)" % vm] + ([] if last else ["s_barrier"])
        f = {} if last else spread(reads((s + 1) & 3, (s + 1) & 1), rg)
        if dma: f = merge(f, spread(dma, dg[:len(dma)]))
        return out + interleave(mfmas(s, first), f)
    full = lambda s: ldX((s + 3) & 3) + dmaW(s, True)
    a.ext(slot_body(0, full(0), 16, first=True))
    for s in range(1, 4): a.ext(slot_body(s, full(s), 16))
    a("s_mov_b32 s37, 6")
    a(".p2align 6")
    a("L_b_zloop:")
    for s in range(4): a.ext(slot_body(s, full(s), 16))
    a("s_sub_u32 s37, s37, 1")
    a("s_cmp_lg_u32 s37, 0")
    a("s_cbranch_scc1 L_b_zloop")
    a.ext(slot_body(0, ldX(3), 16))
    a.ext(slot_body(1, None, 12))
    a.ext(slot_body(2, None, 4))
    a.ext(slot_body(3, None, 0, last=True))
    stamp(a, 2, v)
    GZ2, GZ1 = 16, 144
    a("v_and_b32 v3, 15, v1")
    a("v_lshl_add_u32 v3, v2, 6, v3")
    a("v_lshlrev_b32 v3, 1, v3")
    a("s_lshl_b32 s15, s13, 9")
    for j in range(4): a("buffer_load_ushort v%d, v3, s[52:55], s15 offen offset:%d" % (4 + j, 32 * j))
    STA = 144
    for r in range(16): a("v_mov_b32 v%d, 0" % (STA + r))
    n = 0
    for i in range(7):
        for j in range(4):
            a.ext(gelu_tile(GZ2 + zacc(i, j), 128 + 4 * (n & 1), 112 + zacc(i, j), STA + 4 * j)); n += 1
    for j in range(4):
        a("v_add_f32 v%d, v%d, v%d" % (STA + 4 * j, STA + 4 * j, STA + 4 * j + 1))
        a("v_add_f32 v%d, v%d, v%d" % (STA + 4 * j + 2, STA + 4 * j + 2, STA + 4 * j + 3))
    a("s_nop 1")
    for o in (0, 2):
        a("v_permlane32_swap_b32 v%d, v%d" % (STA + o, STA + 8 + o))
        a("v_permlane32_swap_b32 v%d, v%d" % (STA + 4 + o, STA + 12 + o))
    a("s_nop 1")
    for o in (0, 2):
        a("v_add_f32 v%d, v%d, v%d" % (STA + o, STA + o, STA + 8 + o))
        a("v_add_f32 v%d, v%d, v%d" % (STA + 4 + o, STA + 4 + o, STA + 12 + o))
    a("s_nop 1")
    for o in (0, 2): a("v_permlane16_swap_b32 v%d, v%d" % (STA + o, STA + 4 + o))
    a("s_nop 1")
    a("v_add_f32 v%d, v%d, v%d" % (132, STA, STA + 4))
    a("v_add_f32 v%d, v%d, v%d" % (133, STA + 2, STA + 6))
    a("v_lshlrev_b32 v10, 3, v0")
    a("s_lshl_b32 s34, s13, 15")
    a("s_lshl_b32 s15, s14, 11")
    a("s_add_u32 s15, s15, s34")
    a("buffer_store_dwordx2 v[132:133], v10, s[48:51], s15 offen sc1")
    a("s_nop 1")
    for i in range(7):
        for j in range(4):
            a.ext(gelu_tile(GZ1 + zacc(i, j), 136 + 4 * (n & 1), zacc(i, j))); n += 1
    stamp(a, 3, v)
    a("v_and_b32 v3, 15, v1")
    a("v_lshl_add_u32 v3, v2, 6, v3")
    a("v_lshlrev_b32 v12, 12, v3")
    a("v_bfe_u32 v3, v1, 4, 1")
    a("v_lshl_add_u32 v12, v3, 5, v12")
    a("v_lshrrev_b32 v3, 5, v1")
    a("v_lshl_add_u32 v12, v3, 4, v12")
    for j in range(1, 4): a("v_add_u32 v%d, 0x10000, v%d" % (12 + j, 11 + j))
    a("s_lshl_b32 s32, s13, 20")
    BS = [16 * k for k in range(7)] + [224]
    def ldB(s):
        l = []
        for j in range(4):
            for d in range(2):
                b = BS[(s + d) & 7] + 4 * j
                l.append(["buffer_load_dwordx4 a[%d:%d], v%d, s[44:47], s32 offen offset:%d" % (b, b + 3, 12 + j, 64 * d)])
        l.append(["s_add_u32 s32, s32, 128"])
        return l
    a("s_mov_b32 s37, 0")
    a("L_b_poll1:")
    a("s_mov_b32 s15, s34")
    for f in range(16):
        a("buffer_load_dwordx2 a[%d:%d], v10, s[48:51], s15 offen offset:%d sc1" % (224 + 2 * f, 225 + 2 * f, 2048 * (f & 1)))
        if f & 1: a("s_add_u32 s15, s15, 4096")
    a("s_waitcnt vmcnt(0)")
    a("v_accvgpr_read_b32 v128, a224")
    a("v_accvgpr_read_b32 v129, a225")
    a("v_mov_b32 v130, v129")
    for f in range(1, 16):
        t = 132 + 2 * (f & 1)
        a("v_accvgpr_read_b32 v%d, a%d" % (t, 224 + 2 * f))
        a("v_accvgpr_read_b32 v%d, a%d" % (t + 1, 225 + 2 * f))
        a("v_add_f32 v128, v128, v%d" % t)
        a("v_add_f32 v129, v129, v%d" % (t + 1))
        a("v_max_u32 v130, v130, v%d" % (t + 1))
    a("v_cmp_eq_u32 vcc, -1, v130")
    a("s_add_u32 s37, s37, 1")
    a("s_cmp_ge_u32 s37, %d" % POLL_MAX)
    a("s_cbranch_scc1 L_b_poll1_done")
    a("s_cbranch_vccnz L_b_poll1")
    a("L_b_poll1_done:")
    for s in (0, 2, 4): a.ext(flat(ldB(s)))
    a("v_mul_f32 v128, 0x%x, v128" % f2u(1 / 1792))
    a("v_mul_f32 v129, 0x%x, v129" % f2u(1 / 1792))
    a("v_fma_f32 v129, -v128, v128, v129")
    a("v_max_f32 v129, 0, v129")
    bf16_round(a, 128); bf16_round(a, 129)
    a("v_add_f32 v129, 0x%x, v129" % f2u(1e-5))
    bf16_round(a, 129)
    a("v_sqrt_f32 v129, v129")
    a("s_nop 0")
    bf16_round(a, 129)
    a("v_rcp_f32 v129, v129")
    a("v_and_b32 v3, 15, v1")
    a("v_mul_f32 v128, v128, v129")
    a("v_sub_f32 v128, 0, v128")
    a("v_lshlrev_b32 v3, 2, v3")
    for j in range(4):
        a("ds_bpermute_b32 v%d, v3, v129 offset:%d" % (132 + 2 * j, 64 * j))
        a("ds_bpermute_b32 v%d, v3, v128 offset:%d" % (133 + 2 * j, 64 * j))
    a("v_bfe_u32 v11, v1, 2, 2")
    a("v_lshlrev_b32 v11, 8, v11")
    a("v_lshrrev_b32 v3, 4, v1")
    a("v_lshl_add_u32 v11, v3, 6, v11")
    a("v_and_b32 v3, 3, v1")
    a("v_lshl_add_u32 v11, v3, 4, v11")
    a("s_mul_i32 s33, s14, %d" % (64 * 7168))
    a("s_lshl_b32 s15, s13, 2")
    a("s_add_u32 s15, s15, s10")
    a("s_mul_i32 s15, s15, %d" % (2 * 7168))
    a("s_add_u32 s15, s15, s33")
    a("s_waitcnt lgkmcnt(0)")
    n = 0
    for kk in range(2):
        for i in range(7):
            o = 128 if n & 1 == 0 else 140; n += 1
            for d in range(2):
                j = 2 * kk + d; x = GZ2 + zacc(i, j)
                for h in (0, 2):
                    a("v_pk_fma_f32 v[%d:%d], v[%d:%d], v[%d:%d], v[%d:%d] op_sel:[0,0,1] op_sel_hi:[1,0,1]" % (
                        x + h, x + h + 1, x + h, x + h + 1, 132 + 2 * j, 133 + 2 * j, 132 + 2 * j, 133 + 2 * j))
                for h in (0, 2):
                    a("v_cvt_pk_bf16_f32 v%d, v%d, v%d" % (o + 2 * d + h // 2, x + h, x + h + 1))
            p = kk * 7 + i
            a("buffer_store_dwordx4 v[%d:%d], v11, s[24:27], s15 offen offset:%d sc1" % (o, o + 3, 1024 * (p & 3)))
            if p & 3 == 3: a("s_add_u32 s15, s15, 4096")
    for j in range(4): a("v_lshlrev_b32 v%d, 16, v%d" % (4 + j, 4 + j))
    for i in range(7):
        for j in range(4):
            for e in range(4): a("v_accvgpr_write_b32 a%d, v%d" % (112 + zacc(i, j) + e, 4 + j))
    a("v_lshrrev_b32 v9, 5, v1")
    a("v_lshlrev_b32 v9, 9, v9")
    a("v_and_b32 v3, 3, v1")
    a("v_lshl_add_u32 v9, v3, 6, v9")
    a("v_bfe_u32 v3, v1, 2, 2")
    a("v_lshl_add_u32 v9, v3, 4, v9")
    a("v_bfe_u32 v3, v1, 4, 1")
    a("v_lshl_add_u32 v9, v3, 3, v9")
    a("v_mov_b32 v10, v9")
    a("v_lshlrev_b32 v8, 4, v1")
    a("s_mul_i32 s35, s10, 7168")
    a("v_add_u32 v8, s35, v8")
    a("s_lshl_b32 s15, s14, 7")
    a("s_add_u32 s36, s15, %d" % (256 << 10))
    a("s_lshl_b32 s15, s13, 4")
    a("s_lshl_b32 s38, s10, 2")
    a("s_add_u32 s15, s15, s38")
    a("s_add_u32 s15, s15, s36")
    a("v_mov_b32 v3, 0")
    a("v_mov_b32 v4, 1")
    a("s_waitcnt vmcnt(0)")
    a("s_mov_b64 exec, 1")
    a("buffer_store_dword v4, v3, s[48:51], s15 offen sc1")
    a("s_mov_b64 exec, -1")
    stamp(a, 4, v)
    a("v_and_b32 v3, 31, v1")
    a("v_lshlrev_b32 v3, 2, v3")
    a("s_mov_b32 s37, 0")
    a("L_b_poll2:")
    a("buffer_load_dword v4, v3, s[48:51], s36 offen sc1")
    a("s_waitcnt vmcnt(0)")
    a("v_cmp_ne_u32 vcc, 1, v4")
    a("s_add_u32 s37, s37, 1")
    a("s_cmp_ge_u32 s37, %d" % POLL_MAX)
    a("s_cbranch_scc1 L_b_poll2_done")
    a("s_cbranch_vccnz L_b_poll2")
    a("L_b_poll2_done:")
    a("s_barrier")
    stamp(a, 5, v)
    GA = [16, 44]
    def dmaZ(part, loop=False):
        if part == 0:
            l = [["s_add_u32 m0, s35, s38"] + ([] if loop else ["s_nop 0"])]
            l += [["buffer_load_dwordx4 v8, s[24:27], s33 offen offset:%d sc1 lds" % (1024 * q)] for q in range(4)]
            l += [["s_add_u32 s33, s33, 4096"]]
        else:
            l = [["s_add_u32 m0, m0, 4096"] + ([] if loop else ["s_nop 0"])]
            l += [["buffer_load_dwordx4 v8, s[24:27], s33 offen offset:%d sc1 lds" % (1024 * q)] for q in range(3)]
            l += [["s_add_u32 s33, s33, %d" % (ZSTAGE - 4096), "s_add_u32 s38, s38, %d" % ZSTAGE],
                  ["s_cmp_eq_u32 s38, %d" % (4 * ZSTAGE), "s_cselect_b32 s38, 0, s38"]]
        return l
    def greads(step, st):
        return ["ds_read_b64_tr_b16 v[%d:%d], v10 offset:%d" % (
            GA[st] + 4 * i + 2 * sec, GA[st] + 4 * i + 2 * sec + 1, (step & 3) * 7168 + i * 1024 + sec * 256)
            for i in range(7) for sec in range(2)]
    def gmf(s):
        return [mf16(112 + zacc(i, j), vr(GA[s & 1] + 4 * i, 4), ar(BS[s & 7] + 4 * j, 4)) for i, j in zig(7, 4)]
    a("s_mov_b32 s38, 0")
    a("s_mov_b32 s39, 0")
    for T in range(3):
        a.ext(flat(dmaZ(0))); a.ext(flat(dmaZ(1)))
    a.ext(flat(dmaZ(0)))
    a("s_waitcnt vmcnt(18)")
    a("s_barrier")
    a.ext(greads(0, 0))
    grg = list(range(0, 28, 2))[:14]
    def gstep(s, vm=None, B=True, D=True, last=False):
        out = ["s_waitcnt vmcnt(%d) lgkmcnt(0)" % vm if vm is not None else "s_waitcnt lgkmcnt(0)"]
        f = {}
        if s & 3 == 3 and not last:
            out += ["s_barrier"]
            f[-1] = []
            out += ["s_add_u32 s39, s39, %d" % ZSTAGE, "s_cmp_eq_u32 s39, %d" % (4 * ZSTAGE), "s_cselect_b32 s39, 0, s39",
                    "v_add_u32 v10, s39, v9"]
        if not last: f = merge(f, spread(greads(s + 1, (s + 1) & 1), [1, 2, 3, 4, 6, 8, 10, 12, 14, 16, 18, 20, 22, 23][:14]))
        ex = []
        if s & 1 == 0:
            if B: ex = ldB(s + 6); gl = [5, 7, 9, 11, 13, 15, 17, 19, 21]
        elif D:
            ex = dmaZ(0 if s & 3 == 3 else 1, True); gl = [5, 7, 11, 15, 19, 21]
        if ex: f = merge(f, spread(ex, gl[:len(ex)]))
        return out + interleave(gmf(s), f)
    vm0 = {2: None, 3: 22, 4: None, 6: 26, 7: None}
    seq = ["Z0"] * 7 + ["Z1"] * 7 + ["Z2"] * 7 + ["Z3"] * 4
    waits = {}
    for s in range(0, 64):
        need = []
        if s & 1 == 0 and s >= 6: need.append("B%d" % s)
        if s & 3 == 3 and s < 63: need.append("Z%d" % (s // 4 + 1))
        if need:
            last_idx = max(i for i, t in enumerate(seq) if t in need)
            waits[s] = len(seq) - 1 - last_idx
        if s & 1 == 0:
            if s + 6 < 64: seq += ["B%d" % (s + 6)] * 8
        elif s & 3 == 3:
            if s // 4 + 4 < 16: seq += ["Z%d" % (s // 4 + 4)] * 4
        else:
            if s // 4 + 3 < 16: seq += ["Z%d" % (s // 4 + 3)] * 3
    W = lambda s: min(waits[s], 63) if s in waits else None
    for s in range(0, 8): a.ext(gstep(s, W(s)))
    for s in range(8, 48): assert W(s) == W(8 + (s & 7)), (s, W(s))
    a("s_mov_b32 s37, 5")
    a(".p2align 6")
    a("L_b_gloop:")
    for s in range(8, 16): a.ext(gstep(s, W(s)))
    a("s_sub_u32 s37, s37, 1")
    a("s_cmp_lg_u32 s37, 0")
    a("s_cbranch_scc1 L_b_gloop")
    for s in range(48, 64):
        D = (s // 4 + 4 < 16) if s & 3 == 3 else (s // 4 + 3 < 16)
        a.ext(gstep(s, W(s), B=(s + 6 < 64), D=D, last=(s == 63)))
    stamp(a, 6, v)
    a("s_lshl_b32 s15, s13, 2")
    a("s_add_u32 s15, s15, s10")
    a("s_mul_i32 s15, s15, %d" % (4 * 57344))
    a("s_lshr_b32 s38, s14, 1")
    a("s_mul_i32 s38, s38, 7168")
    a("s_add_u32 s15, s15, s38")
    a("s_and_b32 s38, s14, 1")
    a("s_mul_i32 s39, s38, 3072")
    a("s_lshl_b32 s38, s38, 9")
    a("s_add_u32 s38, s38, s15")
    a("s_add_u32 s38, s38, 6144")
    a("s_add_u32 s15, s15, s39")
    a("v_lshlrev_b32 v3, 4, v1")
    a("v_lshlrev_b32 v4, 3, v1")
    a("s_nop 4")
    n = 0
    for j in range(4):
        for u in range(4):
            t = 16 + 16 * (n % 3); n += 1
            tiles = [2 * u, 2 * u + 1] if u < 3 else [6]
            for d, i in enumerate(tiles):
                for e in range(4): a("v_accvgpr_read_b32 v%d, a%d" % (t + 4 * d + e, 112 + zacc(i, j) + e))
            for d, i in enumerate(tiles):
                for h in (0, 2):
                    x = t + 4 * d + h; z = GZ1 + zacc(i, j) + h
                    a("v_pk_mul_f32 v[%d:%d], v[%d:%d], v[%d:%d]" % (x, x + 1, x, x + 1, z, z + 1))
            for r in range(2 * len(tiles)): a("v_cvt_pk_bf16_f32 v%d, v%d, v%d" % (t + 8 + r, t + 2 * r, t + 2 * r + 1))
            if u < 3: a("buffer_store_dwordx4 v[%d:%d], v3, s[28:31], s15 offen offset:%d" % (t + 8, t + 11, 1024 * u))
            else: a("buffer_store_dwordx2 v[%d:%d], v4, s[28:31], s38 offen" % (t + 8, t + 9))
        if j < 3:
            a("s_add_u32 s15, s15, 57344")
            a("s_add_u32 s38, s38, 57344")
    if v.get("stamps"): a("s_waitcnt vmcnt(0)")
    stamp(a, 7, v)
    stamps_out(a, v, 8, "L_b_st")
    a("s_endpgm")

def gen_k1(a, v, name="main_kernel"):
    kernel_head(a, name)
    a("s_cmp_ge_u32 s2, 256")
    a("s_cbranch_scc1 L_k1_end")
    stamp(a, 0, v)
    a("s_load_dwordx2 s[4:5], s[0:1], 24")
    a("s_load_dwordx2 s[6:7], s[0:1], 48")
    a("s_load_dwordx2 s[8:9], s[0:1], 96")
    a("v_and_b32 v1, 63, v0")
    a("v_lshrrev_b32 v2, 6, v0")
    a("s_and_b32 s11, s2, 7")
    a("v_readfirstlane_b32 s10, v2")
    a("s_lshr_b32 s12, s2, 3")
    a("s_and_b32 s13, s11, 1")
    a("s_lshl_b32 s13, s13, 2")
    a("s_and_b32 s14, s12, 3")
    a("s_add_u32 s13, s13, s14")
    a("s_lshr_b32 s14, s11, 1")
    a("s_lshl_b32 s14, s14, 2")
    a("s_bfe_u32 s15, s12, 0x20002")
    a("s_add_u32 s14, s14, s15")
    a("s_waitcnt lgkmcnt(0)")
    a("s_cmp_lt_u32 s12, 16")
    a("s_cbranch_scc1 L_k1_b")
    gen_a_path(a, v)
    a("L_k1_b:")
    gen_b_path(a, v)
    a("L_k1_end:")
    a("s_endpgm")
    return kernel_desc(name, 512, 100, 256), "; @launch kernel=%s grid=(256,1,1) block=(256,1,1) lds=%d" % (name, K1_LDS)
```

```python
from asmlib import *
from k0 import *
from k1a import *
from k1b import ST_FLAGS, POLL_MAX
import math

PST = 1056
PSLOT = 8 * PST
WS_EX = WS_ST + (1 << 20)
ST_FLAG2 = ST_FLAGS + 2048
N1 = 100

def roll(a, bodies, lblbase, ctr="s37"):
    i = 0; n = 0
    while i < len(bodies):
        j = i
        while j + 1 < len(bodies) and bodies[j + 1] == bodies[i]: j += 1
        cnt = j - i + 1
        if cnt == 1:
            a.ext(bodies[i])
        else:
            l = "%s_%d" % (lblbase, n); n += 1
            a("s_mov_b32 %s, %d" % (ctr, cnt))
            a(".p2align 6")
            a("%s:" % l)
            a.ext(bodies[i])
            a("s_sub_u32 %s, %s, 1" % (ctr, ctr))
            a("s_cmp_lg_u32 %s, 0" % ctr)
            a("s_cbranch_scc1 %s" % l)
        i = j + 1

def gen_stream(a, steps, R, lbl, inserts=None, v=None):
    FA = [16, 48]; FB0 = 80
    inserts = inserts or {}
    n = len(steps); D = R - 1
    def issue(s, loop):
        st = steps[s]; k = st["kind"]; slot = s % R; fb = FB0 + 8 * slot
        m0 = ["s_add_u32 m0, s38, %d" % (slot * PSLOT)] + ([] if loop else ["s_nop 0"])
        if k == "S":
            l = [m0, ["buffer_load_dwordx4 v4, s[16:19], s32 offen lds"],
                 ["buffer_load_dwordx4 v5, s[16:19], s32 offen offset:%d lds" % PST],
                 ["buffer_load_dwordx4 v[%d:%d], v10, s[20:23], s33 offen" % (fb, fb + 3), "s_add_u32 s32, s32, 0x10000"],
                 ["buffer_load_dwordx4 v[%d:%d], v10, s[20:23], s33 offen offset:256" % (fb + 4, fb + 7), "s_add_u32 s33, s33, 2048"]]
            cnt = 4
        else:
            u = st["u"]
            va, vb = ("v6", "v7") if k == "Y" else ("v8", "v9")
            rowb = lambda u: 32 * u if u < 3 else (112 + 32 * (u - 3) if u < 6 else 96)
            nxt = rowb(u + 1) - rowb(u) if u < 6 else 224 - 96
            l = [m0, ["buffer_load_dwordx4 %s, s[24:27], s34 offen lds" % va],
                 ["buffer_load_dwordx4 %s, s[24:27], s34 offen offset:%d lds" % (vb, PST),
                  ("s_add_u32 s34, s34, %d" % (nxt * 2048)) if nxt > 0 else ("s_sub_u32 s34, s34, %d" % (-nxt * 2048))]]
            if k == "Y":
                l += [["buffer_load_dwordx4 v[%d:%d], v11, s[28:31], s35 offen" % (fb, fb + 3), "s_add_u32 s35, s35, 1024"],
                      ["buffer_load_dwordx4 v[%d:%d], v11, s[28:31], s36 offen" % (fb + 4, fb + 7), "s_add_u32 s36, s36, 1024"]]
                cnt = 4
            else:
                l += [["buffer_load_dwordx2 v[%d:%d], v12, s[28:31], s35 offen" % (fb, fb + 1),
                       "buffer_load_dwordx2 v[%d:%d], v12, s[28:31], s35 offen offset:512" % (fb + 2, fb + 3), "s_add_u32 s35, s35, 1024"],
                      ["buffer_load_dwordx2 v[%d:%d], v12, s[28:31], s36 offen" % (fb + 4, fb + 5),
                       "buffer_load_dwordx2 v[%d:%d], v12, s[28:31], s36 offen offset:512" % (fb + 6, fb + 7), "s_add_u32 s36, s36, 1024"]]
                cnt = 6
        return l, cnt
    def reads(s):
        slot = s % R; st = s & 1
        va, off = ("v13", slot * PSLOT) if slot < 7 else ("v14", (slot - 7) * PSLOT)
        return ["ds_read_b64_tr_b16 v[%d:%d], %s offset:%d" % (FA[st] + 4 * i + 2 * sec, FA[st] + 4 * i + 2 * sec + 1, va,
                off + sec * 256 + i * 32) for i in range(8) for sec in range(2)]
    seq = []
    for s in range(D):
        l, c = issue(s, False); a.ext(flat(l)); seq += [s] * c
    def wait_for(smax):
        idx = [i for i, t in enumerate(seq) if t is not None and t <= smax]
        return min(63, len(seq) - 1 - max(idx))
    pro = inserts.get("pro")
    if pro: pro(a)
    a("s_waitcnt vmcnt(%d)" % wait_for(0))
    a("s_barrier")
    a.ext(reads(0))
    if v: stamp(a, 1, v)
    bodies = []; cur = []
    for s in range(n):
        st = steps[s]
        if s in inserts:
            lines, nv = inserts[s]
            cur += lines; seq += [None] * nv
        if s % 2 == 0:
            cur.append("s_waitcnt vmcnt(%d) lgkmcnt(0)" % wait_for(min(s + 2, n - 1)))
            if s + 1 < n: cur.append("s_barrier")
        else:
            cur.append("s_waitcnt lgkmcnt(0)")
        f = {}
        if s + 1 < n: f = spread(reads(s + 1), [0, 0, 1, 1, 2, 2, 3, 4, 5, 6, 7, 8, 9, 10, 11, 12])
        if s + D < n:
            l, c = issue(s + D, True); seq += [s + D] * c
            f = merge(f, spread(l, [3, 5, 8, 11, 13]))
        fb = FB0 + 8 * (s % R)
        mf = [mf16(st["acc"] + (i * 2 + j) * 4, vr(FA[s & 1] + 4 * i, 4), vr(fb + 4 * j, 4), "0" if st.get("first") else None)
              for i, j in zig(8, 2)]
        cur += interleave(mf, f)
        if (s + 1) % R == 0 or s == n - 1:
            bodies.append(cur); cur = []
    roll(a, bodies, lbl)

def gen_k2(a, v, name="final_kernel"):
    n1 = v.get("n1", N1)
    kernel_head(a, name)
    a("s_cmp_ge_u32 s2, 256")
    a("s_cbranch_scc1 L_k2_end")
    stamp(a, 0, v)
    a("s_load_dwordx2 s[4:5], s[0:1], 32")
    a("s_load_dwordx4 s[40:43], s[0:1], 72")
    a("s_load_dwordx2 s[6:7], s[0:1], 0")
    a("s_load_dwordx2 s[8:9], s[0:1], 96")
    a("v_and_b32 v1, 63, v0")
    a("v_lshrrev_b32 v2, 6, v0")
    a("s_and_b32 s11, s2, 7")
    a("v_readfirstlane_b32 s10, v2")
    a("s_lshr_b32 s12, s2, 3")
    a("s_lshr_b32 s13, s11, 1")
    a("s_lshl_b32 s13, s13, 2")
    a("s_and_b32 s15, s12, 3")
    a("s_add_u32 s13, s13, s15")
    a("s_and_b32 s14, s11, 1")
    a("s_lshl_b32 s14, s14, 2")
    a("s_bfe_u32 s15, s12, 0x20002")
    a("s_add_u32 s14, s14, s15")
    a("v_and_b32 v3, 15, v1")
    a("v_lshlrev_b32 v15, 4, v3")
    a("s_lshl_b32 s15, s14, 8")
    a("v_add_u32 v15, s15, v15")
    a("v_and_b32 v3, 1, v2")
    a("v_lshl_add_u32 v15, v3, 12, v15")
    a("v_lshrrev_b32 v16, 5, v1")
    a("v_bfe_u32 v17, v1, 4, 1")
    a("v_lshrrev_b32 v18, 1, v2")
    a("v_lshl_add_u32 v4, v16, 15, v15")
    a("v_lshl_add_u32 v4, v18, 14, v4")
    a("v_lshl_add_u32 v4, v17, 13, v4")
    a("v_add_u32 v5, %d, v4" % (2048 - PST))
    a("v_lshl_add_u32 v8, v16, 14, v15")
    a("v_lshl_add_u32 v8, v18, 13, v8")
    a("v_lshl_add_u32 v6, v17, 15, v8")
    a("v_add_u32 v7, %d, v6" % (2048 - PST))
    a("v_mul_u32_u24 v3, %d, v17" % (112 * 2048))
    a("v_add_u32 v8, v8, v3")
    a("v_add_u32 v9, %d, v8" % (2048 - PST))
    a("v_and_b32 v10, 15, v1")
    a("v_lshlrev_b32 v10, 4, v10")
    a("v_lshrrev_b32 v3, 4, v1")
    a("v_lshl_add_u32 v10, v3, 9, v10")
    a("v_lshlrev_b32 v11, 4, v1")
    a("v_lshlrev_b32 v12, 3, v1")
    a("v_bfe_u32 v3, v1, 2, 3")
    a("v_mul_u32_u24 v13, %d, v3" % PST)
    a("v_lshl_add_u32 v13, v16, 9, v13")
    a("v_and_b32 v3, 3, v1")
    a("v_lshl_add_u32 v13, v3, 3, v13")
    a("v_add_u32 v14, %d, v13" % (7 * PSLOT))
    a("s_mul_i32 s38, s10, %d" % (2 * PST))
    a("s_waitcnt lgkmcnt(0)")
    srd(a, 16, 4, 4096 * 1024 * 2)
    srd(a, 20, 8, 16 << 20, WS_O)
    srd(a, 24, 40, 1792 * 1024 * 2)
    srd(a, 28, 8, 7 << 20, WS_H)
    srd(a, 44, 8, 128 * 4 * 24576, WS_EX)
    srd(a, 48, 8, 2048, ST_FLAG2)
    a("s_lshl_b32 s15, s13, 2")
    a("s_add_u32 s15, s15, s10")
    a("s_lshl_b32 s33, s15, 18")
    a("s_mul_i32 s35, s15, %d" % (2 * 57344))
    a("s_add_u32 s36, s35, 57344")
    a("s_mov_b32 s34, 0")
    a("s_lshl_b32 s39, s13, 3")
    a("s_add_u32 s39, s39, s14")
    a("s_lshl_b32 s39, s39, 2")
    a("s_add_u32 s39, s39, s10")
    a("s_mul_i32 s52, s39, 24576")
    a("s_lshl_b32 s53, s39, 2")
    a("s_cmp_ge_u32 s2, 128")
    a("s_cbranch_scc1 L_k2_t1")
    a("s_mov_b32 s32, %d" % (n1 * 32 * 2048))
    a("s_add_u32 s33, s33, %d" % (n1 * 2048))
    ns = 128 - n1
    steps = [dict(kind="S", acc=64, first=(s == 0)) for s in range(ns)]
    steps += [dict(kind="Y" if s % 7 < 6 else "YS", u=s % 7, acc=0, first=(s == 0)) for s in range(56)]
    ins = {}
    if ns:
        l = ["s_nop 7"]
        for p in range(16):
            l.append("buffer_store_dwordx4 a[%d:%d], v11, s[44:47], s52 offen offset:%d sc1" % (64 + 4 * p, 67 + 4 * p, 1024 * (p & 3)))
            if p & 3 == 3: l.append("s_add_u32 s52, s52, 4096")
        ins[ns] = (l, 16)
    else:
        a("s_add_u32 s52, s52, 16384")
    gen_stream(a, steps, 14, "L_k2_a", ins, v)
    stamp(a, 2, v)
    a("s_mov_b32 s60, 0x%x" % f2u(-math.log2(math.e)))
    a("s_nop 6")
    for p in range(8):
        t = 16 + 24 * (p & 1)
        for r in range(8): a("v_accvgpr_read_b32 v%d, a%d" % (t + r, 8 * p + r))
        for r in range(8): a("v_mul_f32 v%d, s60, v%d" % (t + 8 + r, t + r))
        for r in range(8): a("v_exp_f32 v%d, v%d" % (t + 8 + r, t + 8 + r))
        for r in range(8): a("v_add_f32 v%d, 1.0, v%d" % (t + 8 + r, t + 8 + r))
        for r in range(8): a("v_rcp_f32 v%d, v%d" % (t + 8 + r, t + 8 + r))
        for r in range(8): a("v_mul_f32 v%d, v%d, v%d" % (t + r, t + r, t + 8 + r))
        for r in range(4): a("v_cvt_pk_bf16_f32 v%d, v%d, v%d" % (t + 16 + r, t + 2 * r, t + 2 * r + 1))
        a("buffer_store_dwordx4 v[%d:%d], v11, s[44:47], s52 offen offset:%d sc1" % (t + 16, t + 19, 1024 * (p & 3)))
        if p == 3: a("s_add_u32 s52, s52, 4096")
    a("v_mov_b32 v3, 0")
    a("v_mov_b32 v4, 1")
    a("s_waitcnt vmcnt(0)")
    a("s_mov_b64 exec, 1")
    a("buffer_store_dword v4, v3, s[48:51], s53 offen sc1")
    a("s_mov_b64 exec, -1")
    stamp(a, 3, v)
    stamps_out(a, v, 4, "L_k2_st2", 49)
    a("s_endpgm")
    a("L_k2_t1:")
    a("s_mov_b32 s32, 0")
    steps = [dict(kind="S", acc=0, first=(s == 0)) for s in range(n1)]
    gen_stream(a, steps, v.get("r1", 10), "L_k2_b", None, v)
    stamp(a, 2, v)
    srd(a, 16, 6, 2048 * 1024 * 2)
    srd(a, 20, 42, 2048 * 1024 * 2)
    a("v_and_b32 v5, 15, v1")
    a("v_lshlrev_b32 v5, 11, v5")
    a("v_bfe_u32 v3, v1, 4, 1")
    a("v_lshl_add_u32 v5, v3, 5, v5")
    a("v_lshrrev_b32 v3, 5, v1")
    a("v_lshl_add_u32 v5, v3, 4, v5")
    a("s_lshl_b32 s15, s13, 2")
    a("s_add_u32 s15, s15, s10")
    a("s_lshl_b32 s15, s15, 16")
    a("s_lshl_b32 s34, s14, 8")
    a("s_add_u32 s34, s34, s15")
    a("s_add_u32 s35, s34, 0x8000")
    XR, SP, GT = 16, 48, 112
    for j in range(2):
        for u in range(4):
            r = XR + (j * 4 + u) * 4
            a("buffer_load_dwordx4 v[%d:%d], v5, s[16:19], s%d offen offset:%d" % (r, r + 3, 34 + j, 64 * u))
    a("v_mov_b32 v3, 0")
    a("s_mov_b32 s37, 0")
    a("L_k2_poll:")
    a("buffer_load_dword v4, v3, s[48:51], s53 offen sc1")
    a("s_waitcnt vmcnt(0)")
    a("v_cmp_ne_u32 vcc, 1, v4")
    a("s_add_u32 s37, s37, 1")
    a("s_cmp_ge_u32 s37, %d" % POLL_MAX)
    a("s_cbranch_scc1 L_k2_poll_done")
    a("s_cbranch_vccnz L_k2_poll")
    a("L_k2_poll_done:")
    stamp(a, 3, v)
    for p in range(24):
        if p >= 16 or n1 < 128:
            r = SP + 4 * p
            a("buffer_load_dwordx4 v[%d:%d], v11, s[44:47], s52 offen offset:%d sc1" % (r, r + 3, 1024 * (p & 3)))
        if p & 3 == 3: a("s_add_u32 s52, s52, 4096")
    a("s_waitcnt vmcnt(0)")
    n = 0
    for j in range(2):
        for u in range(4):
            t = 160 + 16 * (n % 3); n += 1
            for d in range(2):
                q = ((2 * u + d) * 2 + j) * 4
                for e in range(4): a("v_accvgpr_read_b32 v%d, a%d" % (t + 4 * d + e, q + e))
            for d in range(2):
                q = ((2 * u + d) * 2 + j) * 4
                if n1 < 128:
                    for h in (0, 2):
                        a("v_pk_add_f32 v[%d:%d], v[%d:%d], v[%d:%d]" % (t + 4 * d + h, t + 4 * d + h + 1, t + 4 * d + h, t + 4 * d + h + 1, SP + q + h, SP + q + h + 1))
                for h in (0, 2):
                    gsrc = GT + q // 2 + h // 2
                    a("v_lshlrev_b32 v%d, 16, v%d" % (t + 8, gsrc))
                    a("v_and_b32 v%d, 0xffff0000, v%d" % (t + 9, gsrc))
                    a("v_pk_mul_f32 v[%d:%d], v[%d:%d], v[%d:%d]" % (t + 4 * d + h, t + 4 * d + h + 1, t + 4 * d + h, t + 4 * d + h + 1, t + 8, t + 9))
            a("s_nop 1")
            for e in range(4): a("v_permlane16_swap_b32 v%d, v%d" % (t + e, t + 4 + e))
            xr = XR + (j * 4 + u) * 4
            for r in range(4):
                a("v_lshlrev_b32 v%d, 16, v%d" % (t + 8, xr + r))
                a("v_and_b32 v%d, 0xffff0000, v%d" % (t + 9, xr + r))
                a("v_pk_add_f32 v[%d:%d], v[%d:%d], v[%d:%d]" % (t + 2 * r, t + 2 * r + 1, t + 2 * r, t + 2 * r + 1, t + 8, t + 9))
                a("v_cvt_pk_bf16_f32 v%d, v%d, v%d" % (t + 12 + r, t + 2 * r, t + 2 * r + 1))
            a("buffer_store_dwordx4 v[%d:%d], v5, s[20:23], s%d offen offset:%d" % (t + 12, t + 15, 34 + j, 64 * u))
    if v.get("stamps"): a("s_waitcnt vmcnt(0)")
    stamp(a, 4, v)
    stamps_out(a, v, 5, "L_k2_st1", 49)
    a("L_k2_end:")
    a("s_endpgm")
    return kernel_desc(name, 384, 100, 256), "; @launch kernel=%s grid=(256,1,1) block=(256,1,1) lds=%d" % (name, 14 * PSLOT)
```

```python
import sys
from asmlib import *
from k0 import *
from k1a import *
from k1b import *
from k2 import *
HDR = open("recurrent_scan__sliding_block_cached__mixer_gmlp__prompt.s.ref").read().split("; Override")[0]
def build(path, v=None):
    v = v or {}
    a = Asm()
    d0, l0 = gen_k0(a)
    d1, l1 = gen_k1(a, v)
    d2, l2 = gen_k2(a, v)
    txt = HDR + l0 + "\n" + l1 + "\n" + l2 + "\n" + '.amdgcn_target "amdgcn-amd-amdhsa--gfx950"\n.text\n' + a.text()
    txt += '.section .rodata,"a"\n.p2align 6\n' + d0 + ".p2align 6\n" + d1 + ".p2align 6\n" + d2
    open(path, "w").write(txt)
if __name__ == "__main__":
    build("full_st.s", dict(stamps=True))
    build("full.s")
    build("full_fb.s", dict(lo=20))
```

```python
class Asm:
    def __init__(self):
        self.lines = []
    def __call__(self, s=""):
        for l in s.split("\n"):
            l = l.strip()
            if l == "": continue
            self.lines.append(l if l.endswith(":") or l.startswith(".") or l.startswith(";") else "    " + l)
    def ext(self, lst):
        for l in lst: self(l)
    def text(self):
        out = []
        for l in self.lines:
            t = l.strip()
            if out and t.endswith(" lds") and t.startswith("buffer_load") and " m0," in out[-1]:
                out.append("s_nop 0")
            out.append(t)
        return "\n".join(out) + "\n"

def vr(b, n=1):
    return "v%d" % b if n == 1 else "v[%d:%d]" % (b, b + n - 1)
def ar(b, n=1):
    return "a%d" % b if n == 1 else "a[%d:%d]" % (b, b + n - 1)
def sr(b, n=1):
    return "s%d" % b if n == 1 else "s[%d:%d]" % (b, b + n - 1)

def srd(a, d, base, nbytes, off=0):
    if off:
        a("s_add_u32 s%d, s%d, 0x%x" % (d, base, off))
        a("s_addc_u32 s%d, s%d, 0" % (d + 1, base + 1))
    else:
        a("s_mov_b32 s%d, s%d" % (d, base))
        a("s_mov_b32 s%d, s%d" % (d + 1, base + 1))
    a("s_mov_b32 s%d, 0x%x" % (d + 2, nbytes))
    a("s_mov_b32 s%d, 0x00020000" % (d + 3))

def interleave(mf, fill):
    out = []
    out += fill.get(-1, [])
    for i, m in enumerate(mf):
        out.append(m)
        out += fill.get(i, [])
    return out

def spread(items, gaps):
    d = {}
    n = len(items); g = len(gaps)
    for k, it in enumerate(items):
        gi = gaps[(k * g) // n]
        d.setdefault(gi, [])
        d[gi] += it if isinstance(it, list) else [it]
    return d

def merge(*ds):
    out = {}
    for d in ds:
        for k, v in d.items():
            out.setdefault(k, [])
            out[k] += v
    return out

def kernel_desc(name, vgpr, sgpr, accum):
    return """.amdhsa_kernel %s
  .amdhsa_next_free_vgpr %d
  .amdhsa_next_free_sgpr %d
  .amdhsa_accum_offset %d
  .amdhsa_group_segment_fixed_size 0
  .amdhsa_kernarg_size 104
  .amdhsa_user_sgpr_count 2
  .amdhsa_user_sgpr_kernarg_segment_ptr 1
  .amdhsa_system_sgpr_workgroup_id_x 1
.end_amdhsa_kernel
""" % (name, vgpr, sgpr, accum)

def kernel_head(a, name):
    a(".globl %s" % name)
    a(".p2align 8")
    a(".type %s,@function" % name)
    a("%s:" % name)
```

```python
from asmlib import *
from k0 import *

REG = 4416
QST = 1056
WSLOT = 4 * REG
flat = lambda ll: [x for l in ll for x in l]

def mf16(d, A, B, c=None, acc="a"):
    D = "%s[%d:%d]" % (acc, d, d + 3)
    return "v_mfma_f32_16x16x32_bf16 %s, %s, %s, %s" % (D, A, B, D if c is None else c)
def mf32(d, A, B, c=None, acc="a"):
    D = "%s[%d:%d]" % (acc, d, d + 15)
    return "v_mfma_f32_32x32x16_bf16 %s, %s, %s, %s" % (D, A, B, D if c is None else c)

def zig(ni, nj):
    seq = []
    for i2 in range(0, ni, 2):
        js = range(nj) if (i2 // 2) % 2 == 0 else range(nj - 1, -1, -1)
        if i2 + 1 < ni:
            for n, j in enumerate(js):
                seq += [(i2, j), (i2 + 1, j)] if n % 2 == 0 else [(i2 + 1, j), (i2, j)]
        else:
            seq += [(i2, j) for j in js]
    return seq

def stamp(a, idx, v):
    if v.get("stamps"):
        a("s_memtime s[%d:%d]" % (64 + 4 * idx, 65 + 4 * idx))
        a("s_memrealtime s[%d:%d]" % (66 + 4 * idx, 67 + 4 * idx))

def stamps_out(a, v, n, lbl, area=48):
    if not v.get("stamps"): return
    a("s_cmp_lg_u32 s10, 0")
    a("s_cbranch_scc1 %s" % lbl)
    srd(a, 56, 8, 64 << 20, WS_DBG)
    a("s_waitcnt lgkmcnt(0)")
    a("s_lshl_b32 s3, s2, 7")
    a("s_add_u32 s3, s3, %d" % (area << 20))
    a("v_mov_b32 v3, 0")
    a("s_mov_b64 exec, 1")
    for i in range(n):
        for r in range(4): a("v_mov_b32 v%d, s%d" % (16 + r, 64 + 4 * i + r))
        a("buffer_store_dwordx4 v[16:19], v3, s[56:59], s3 offen offset:%d" % (16 * i))
        a("s_nop 1")
    a("s_mov_b64 exec, -1")
    a("%s:" % lbl)

def ablate(lines, v, key):
    k = v.get(key)
    if not k: return lines
    out = []
    for l in lines:
        if "nomfma" in k and l.startswith("v_mfma"): continue
        if "nods" in k and l.startswith("ds_read"): continue
        if "nobar" in k and l.startswith("s_barrier"): continue
        if "nodma" in k and l.startswith("buffer_load") and l.endswith("lds"): continue
        if "nold" in k and l.startswith("buffer_load") and not l.endswith("lds"): continue
        if "noS" in k and l.startswith("buffer_load") and "s[44:47]" in l: continue
        if "noZ" in k and l.startswith("buffer_load") and "s[24:27]" in l: continue
        if "novalu" in k and l.startswith("v_") and not l.startswith("v_mfma"): continue
        out.append(l)
    return out

def roll(a, bodies, lblbase, ctr="s37"):
    i = 0; n = 0
    while i < len(bodies):
        j = i
        while j + 1 < len(bodies) and bodies[j + 1] == bodies[i]: j += 1
        cnt = j - i + 1
        if cnt == 1:
            a.ext(bodies[i])
        else:
            l = "%s_%d" % (lblbase, n); n += 1
            a("s_mov_b32 %s, %d" % (ctr, cnt))
            a(".p2align 6")
            a("%s:" % l)
            a.ext(bodies[i])
            a("s_sub_u32 %s, %s, 1" % (ctr, ctr))
            a("s_cmp_lg_u32 %s, 0" % ctr)
            a("s_cbranch_scc1 %s" % l)
        i = j + 1

def nvm(groups):
    return sum(1 for g in groups for l in g if l.startswith("buffer_") or l.startswith("global_"))

def place_free(groups, busy, ngaps, lo=0, avoid_same=True):
    d = {}; n = len(groups)
    if n == 0: return d
    free = [g for g in range(lo, ngaps) if g not in busy]
    use = free if len(free) >= n else list(range(lo, ngaps))
    prev = -1
    for k, it in enumerate(groups):
        g = use[(k * len(use)) // n]
        d.setdefault(g, []); d[g] += it
    return d

def gemm41_setup(a, NI):
    a("v_and_b32 v8, 15, v1")
    a("v_lshlrev_b32 v8, 4, v8")
    a("v_lshrrev_b32 v3, 4, v1")
    a("v_lshl_add_u32 v8, v3, 9, v8")
    a("v_lshl_add_u32 v8, v2, 12, v8")
    a("s_mov_b32 s32, 0")
    a("s_lshl_b32 s33, s13, 19")
    a("s_mul_i32 s35, s10, %d" % REG)

def gemm41(a, v, NI, STR, accf, lbl, extra=None, lastreads=None, needs=None, R=6, NS=32):
    extra = extra or {}; needs = needs or {}
    FA = [16, 16 + 4 * NI]; FB = [16 + 8 * NI + 16 * k for k in range(R)]
    def dmaW(t, loop=True):
        l = [["s_add_u32 m0, s35, %d" % ((t % R) * WSLOT)] + ([] if loop else ["s_nop 0"]),
             ["buffer_load_dwordx4 v4, s[16:19], s32 offen lds"]]
        for q in range(1, 4):
            l.append(["buffer_load_dwordx4 v%d, s[16:19], s32 offen offset:%d lds" % (4 + q, QST * q)])
        l[-1].append("s_add_u32 s32, s32, 0x%x" % (32 * STR))
        return l
    def ldX(t):
        b = FB[t % R]
        l = [["buffer_load_dwordx4 v[%d:%d], v8, s[20:23], s33 offen offset:%d" % (
            b + 4 * j, b + 4 * j + 3, (j >> 1) * 2048 + (j & 1) * 256)] for j in range(4)]
        l[-1].append("s_add_u32 s33, s33, 0x4000")
        return l
    def reads(t):
        st = t & 1; slot = t % R
        va, off = ("v9", slot * WSLOT) if slot < 3 else ("v10", (slot - 3) * WSLOT)
        return ["ds_read_b64_tr_b16 v[%d:%d], %s offset:%d" % (
            FA[st] + 4 * i + 2 * sec, FA[st] + 4 * i + 2 * sec + 1, va, off + sec * 512 + i * 32)
            for i in range(NI) for sec in range(2)]
    seq = []
    def emit_pro(tag, groups):
        a.ext(flat(groups)); seq.extend([tag] * nvm(groups))
    PRE = v.get("pre", 2)
    emit_pro("W0", dmaW(0, False))
    for t in range(PRE):
        emit_pro("X%d" % t, ldX(t)); emit_pro("W%d" % (t + 1), dmaW(t + 1, False))
    a("v_bfe_u32 v3, v1, 2, 2")
    a("v_mul_u32_u24 v9, %d, v3" % REG)
    a("v_lshrrev_b32 v3, 4, v1")
    a("v_mul_u32_u24 v3, %d, v3" % QST)
    a("v_add_u32 v9, v9, v3")
    a("v_and_b32 v3, 3, v1")
    a("v_lshl_add_u32 v9, v3, 3, v9")
    a("v_add_u32 v10, %d, v9" % (3 * WSLOT))
    if "pro" in extra: extra["pro"](a)
    def vm(tags):
        idx = [i for i, t in enumerate(seq) if t in tags]
        return min(63, len(seq) - 1 - max(idx)) if idx else 63
    a("s_waitcnt vmcnt(%d)" % vm(["W0"]))
    a("s_barrier")
    a.ext(reads(0))
    stamp(a, 1, v)
    nxt = PRE
    NG = 4 * NI
    bodies = []; cur = []
    for s in range(NS):
        cur += ["s_waitcnt vmcnt(%d) lgkmcnt(0)" % vm(["X%d" % s, "W%d" % (s + 1)] + needs.get(s, [])), "s_barrier"]
        rd = reads(s + 1) if s + 1 < NS else (lastreads or [])
        nr = len(rd)
        rgaps = [(k * 3) // 2 for k in range(nr)]
        f = spread(rd, rgaps) if rd else {}
        groups = []
        cnt = 0
        while nxt <= s + R - 1 and cnt < 2:
            if nxt < NS: g = ldX(nxt); groups += g; seq.extend(["X%d" % nxt] * 4)
            if nxt + 1 < NS: g = dmaW(nxt + 1); groups += g; seq.extend(["W%d" % (nxt + 1)] * 4)
            nxt += 1; cnt += 1
        for tag, g in extra.get(s, []):
            groups += g; seq.extend([tag] * nvm(g))
        f = merge(f, place_free(groups, set(rgaps), NG - 2, 2))
        mf = [mf16(accf(i, j), vr(FA[s & 1] + 4 * i, 4), vr(FB[s % R] + 4 * j, 4), "0" if s == 0 else None) for i, j in zig(NI, 4)]
        cur += interleave(mf, f)
        if (s + 1) % R == 0 and s + 1 <= NS - R - 2 or s == NS - 1:
            bodies.append(cur); cur = []
    roll(a, [ablate(b, v, "abQ") for b in bodies], lbl)
    return seq
```

```python
from asmlib import *
import math, struct

WS_XN  = 0
WS_KV  = 4 << 20
WS_O   = 8 << 20
WS_Z1  = 24 << 20
WS_Z2  = 32 << 20
WS_H   = 40 << 20
WS_ST  = 48 << 20
WS_DBG = 64 << 20
WS_BYTES = 268435456

def f2u(x): return struct.unpack("<I", struct.pack("<f", x))[0]
QK_SCALE = (128 ** -0.5) * math.log2(math.e)

def bf16_round(a, v, tmp=None):
    a("v_cvt_pk_bf16_f32 v%d, v%d, v%d" % (v, v, v))
    a("v_and_b32 v%d, 0xffff0000, v%d" % (v, v))

def k0_stamp_out(a, v):
    if not v.get("stamps"): return
    a("s_waitcnt vmcnt(0)")
    a("s_memrealtime s[34:35]")
    srd(a, 28, 6, 64 << 20, WS_DBG)
    a("s_lshl_b32 s3, s2, 4")
    a("s_add_u32 s3, s3, %d" % (50 << 20))
    a("v_mov_b32 v3, 0")
    a("s_waitcnt lgkmcnt(0)")
    for r in range(4): a("v_mov_b32 v%d, s%d" % (8 + r, 32 + r))
    a("v_cmp_eq_u32 vcc, 0, v0")
    a("s_and_saveexec_b64 s[36:37], vcc")
    a("buffer_store_dwordx4 v[8:11], v3, s[28:31], s3 offen")

def k0_prefetch(a, v):
    rows = v.get("pf0", 0)
    if not rows: return
    a("s_load_dwordx2 s[36:37], s[0:1], 24")
    a("s_load_dwordx2 s[38:39], s[0:1], 48")
    a("v_lshlrev_b32 v56, 7, v0")
    a("s_lshl_b32 s3, s2, 15")
    a("s_waitcnt lgkmcnt(0)")
    srd(a, 40, 36, rows * 8192)
    srd(a, 44, 38, rows * 7168)
    a("buffer_load_dword v57, v56, s[40:43], s3 offen")
    a("s_sub_u32 s3, %d, s3" % (319 << 15))
    a("buffer_load_dword v57, v56, s[44:47], s3 offen")

def k0_codepf(a, v):
    if not v.get("cpf"): return 0
    a("s_getpc_b64 s[48:49]")
    a("L_k0_pc:")
    a("s_add_u32 s48, s48, main_kernel-L_k0_pc")
    a("s_addc_u32 s49, s49, 0")
    a("s_bfe_u32 s50, s2, 0x20003")
    a("s_lshl_b32 s50, s50, 8")
    a("v_add_u32 v56, s50, v0")
    a("v_lshlrev_b32 v56, 7, v56")
    a("v_min_u32 v56, L_code_end-main_kernel-4, v56")
    a("global_load_dword v57, v56, s[48:49]")
    return 1

def gen_k0(a, v, name="prep_kernel"):
    kernel_head(a, name)
    a("s_cmp_ge_u32 s2, 320")
    a("s_cbranch_scc1 L_k0_end")
    if v.get("stamps"): a("s_memrealtime s[32:33]")
    a("s_load_dwordx2 s[4:5], s[0:1], 0")
    a("s_load_dwordx4 s[8:11], s[0:1], 8")
    a("s_load_dwordx2 s[6:7], s[0:1], 96")
    a("v_and_b32 v1, 63, v0")
    a("v_lshrrev_b32 v2, 6, v0")
    a("s_waitcnt lgkmcnt(0)")
    a("s_cmp_ge_u32 s2, 256")
    a("s_cbranch_scc1 L_k0_kv")
    srd(a, 12, 4, 2048 * 1024 * 2)
    srd(a, 16, 6, 4 << 20, WS_XN)
    srd(a, 24, 6, 256 << 10, WS_ST)
    a("v_lshlrev_b32 v3, 2, v0")
    a("v_mov_b32 v4, -1")
    a("s_lshl_b32 s3, s2, 10")
    a("buffer_store_dword v4, v3, s[24:27], s3 offen")
    a("v_and_b32 v3, 7, v1")
    a("v_lshrrev_b32 v4, 3, v1")
    a("v_lshlrev_b32 v5, 11, v3")
    a("v_lshl_add_u32 v5, v4, 4, v5")
    a("v_lshl_add_u32 v5, v2, 9, v5")
    a("s_lshl_b32 s3, s2, 14")
    for i in range(4):
        a("buffer_load_dwordx4 v[%d:%d], v5, s[12:15], s3 offen offset:%d" % (8 + 4 * i, 11 + 4 * i, 128 * i))
    k0_prefetch(a, v)
    npf = (2 if v.get("pf0") else 0) + k0_codepf(a, v)
    a("v_lshrrev_b32 v6, 2, v4")
    a("v_lshl_add_u32 v6, v2, 3, v6")
    a("v_lshlrev_b32 v6, 14, v6")
    a("v_and_b32 v7, 3, v4")
    a("v_lshl_add_u32 v6, v7, 9, v6")
    a("v_lshl_add_u32 v6, v3, 4, v6")
    a("s_lshr_b32 s20, s2, 5")
    a("s_lshl_b32 s20, s20, 19")
    a("s_bfe_u32 s21, s2, 0x30002")
    a("s_lshl_b32 s21, s21, 11")
    a("s_add_u32 s20, s20, s21")
    a("s_and_b32 s21, s2, 3")
    a("s_lshl_b32 s21, s21, 7")
    a("s_add_u32 s20, s20, s21")
    a("s_add_u32 s21, s20, 0x8000")
    a("s_add_u32 s22, s20, 0x10000")
    a("s_add_u32 s23, s20, 0x18000")
    a("v_lshlrev_b32 v62, 3, v3")
    a("v_lshl_add_u32 v63, v2, 6, v62")
    a("v_mov_b32 v60, 0")
    a("v_mov_b32 v61, 0")
    for i in range(4):
        a("s_waitcnt vmcnt(%d)" % (3 - i + npf))
        for r in range(4):
            src = 8 + 4 * i + r; d = 24 + 8 * i + 2 * r
            a("v_lshlrev_b32 v%d, 16, v%d" % (d, src))
            a("v_and_b32 v%d, 0xffff0000, v%d" % (d + 1, src))
            a("v_add_f32 v60, v60, v%d" % d)
            a("v_fmac_f32 v61, v%d, v%d" % (d, d))
            a("v_add_f32 v60, v60, v%d" % (d + 1))
            a("v_fmac_f32 v61, v%d, v%d" % (d + 1, d + 1))
    a("s_nop 1")
    a("v_add_f32_dpp v60, v60, v60 row_ror:8 row_mask:0xf bank_mask:0xf")
    a("v_add_f32_dpp v61, v61, v61 row_ror:8 row_mask:0xf bank_mask:0xf")
    for sw in ("v_permlane16_swap_b32", "v_permlane32_swap_b32"):
        a("v_mov_b32 v58, v60")
        a("v_mov_b32 v59, v61")
        a("s_nop 1")
        a("%s v60, v58" % sw)
        a("%s v61, v59" % sw)
        a("s_nop 1")
        a("v_add_f32 v60, v60, v58")
        a("v_add_f32 v61, v61, v59")
    a("ds_write_b64 v63, v[60:61]")
    a("s_waitcnt lgkmcnt(0)")
    a("s_barrier")
    for w in range(4):
        a("ds_read_b64 v[%d:%d], v62 offset:%d" % (8 + 2 * w, 9 + 2 * w, 64 * w))
    a("s_waitcnt lgkmcnt(0)")
    a("v_add_f32 v8, v8, v10"); a("v_add_f32 v9, v9, v11")
    a("v_add_f32 v12, v12, v14"); a("v_add_f32 v13, v13, v15")
    a("v_add_f32 v8, v8, v12"); a("v_add_f32 v9, v9, v13")
    a("v_mul_f32 v8, 0x%x, v8" % f2u(1 / 1024))
    a("v_mul_f32 v9, 0x%x, v9" % f2u(1 / 1024))
    a("v_fma_f32 v9, -v8, v8, v9")
    a("v_max_f32 v9, 0, v9")
    bf16_round(a, 8); bf16_round(a, 9)
    a("v_add_f32 v9, 0x%x, v9" % f2u(1e-5))
    bf16_round(a, 9)
    a("v_sqrt_f32 v9, v9")
    a("s_nop 0")
    bf16_round(a, 9)
    a("v_rcp_f32 v9, v9")
    a("s_nop 0")
    for i in range(4):
        for r in range(4):
            d = 24 + 8 * i + 2 * r
            a("v_sub_f32 v%d, v%d, v8" % (d, d))
            a("v_sub_f32 v%d, v%d, v8" % (d + 1, d + 1))
            a("v_cvt_pk_bf16_f32 v%d, v%d, v%d" % (d + 1, d, d + 1))
            a("v_lshlrev_b32 v%d, 16, v%d" % (d, d + 1))
            a("v_and_b32 v%d, 0xffff0000, v%d" % (d + 1, d + 1))
            a("v_mul_f32 v%d, v%d, v9" % (d, d))
            a("v_mul_f32 v%d, v%d, v9" % (d + 1, d + 1))
            a("v_cvt_pk_bf16_f32 v%d, v%d, v%d" % (12 + 4 * (i & 1) + r, d, d + 1))
        o = 12 + 4 * (i & 1)
        a("buffer_store_dwordx4 v[%d:%d], v6, s[16:19], s%d offen" % (o, o + 3, 20 + i))
        a("s_nop 1")
    k0_stamp_out(a, v)
    a("s_endpgm")
    a("L_k0_kv:")
    srd(a, 12, 8, 4 * 2048 * 128 * 2)
    srd(a, 16, 10, 4 * 2048 * 128 * 2)
    srd(a, 24, 6, 1 << 20, WS_KV)
    a("s_sub_u32 s3, s2, 256")
    srd(a, 28, 6, 4096, WS_ST + (256 << 10))
    a("v_lshlrev_b32 v3, 2, v0")
    a("v_mov_b32 v4, 0")
    a("s_lshl_b32 s20, s3, 10")
    a("buffer_store_dword v4, v3, s[28:31], s20 offen")
    a("s_lshr_b32 s20, s3, 4")
    a("s_and_b32 s21, s3, 15")
    a("s_lshl_b32 s20, s20, 19")
    a("s_lshl_b32 s21, s21, 13")
    a("s_add_u32 s20, s20, s21")
    a("s_add_u32 s20, s20, %d" % (1536 * 256))
    a("s_lshl_b32 s21, s3, 14")
    a("v_and_b32 v3, 31, v1")
    a("v_lshrrev_b32 v4, 5, v1")
    a("v_lshlrev_b32 v5, 8, v3")
    a("v_lshl_add_u32 v5, v4, 4, v5")
    a("v_lshl_add_u32 v5, v2, 6, v5")
    a("buffer_load_dwordx4 v[8:11], v5, s[12:15], s20 offen")
    a("buffer_load_dwordx4 v[12:15], v5, s[12:15], s20 offen offset:32")
    a("v_lshrrev_b32 v6, 2, v3")
    a("v_and_b32 v7, 1, v6")
    a("v_bfe_u32 v16, v6, 1, 1")
    a("v_lshlrev_b32 v7, 3, v7")
    a("v_lshl_add_u32 v7, v16, 2, v7")
    a("v_and_b32 v16, 0x13, v3")
    a("v_add_u32 v7, v7, v16")
    a("v_lshl_add_u32 v7, v2, 5, v7")
    a("v_lshlrev_b32 v7, 1, v7")
    a("v_lshl_add_u32 v7, v4, 10, v7")
    a("v_add_u32 v17, 0x1000, v7")
    for sp in range(2):
        for i in range(8):
            a("buffer_load_ushort v%d, v%d, s[16:19], s20 offen offset:%d" %
              (24 + 8 * sp + i, 7 if sp == 0 else 17, ((i >> 2) * 8 + (i & 3)) * 256))
    a("v_lshlrev_b32 v18, 4, v1")
    a("v_lshl_add_u32 v18, v2, 11, v18")
    a("s_mov_b32 s22, 0x%x" % f2u(QK_SCALE))
    a("s_waitcnt vmcnt(16)")
    for r in range(8):
        a("v_lshlrev_b32 v20, 16, v%d" % (8 + r))
        a("v_and_b32 v21, 0xffff0000, v%d" % (8 + r))
        a("v_mul_f32 v20, s22, v20")
        a("v_mul_f32 v21, s22, v21")
        a("v_cvt_pk_bf16_f32 v%d, v20, v21" % (8 + r))
    a("buffer_store_dwordx4 v[8:11], v18, s[24:27], s21 offen")
    a("buffer_store_dwordx4 v[12:15], v18, s[24:27], s21 offen offset:1024")
    a("s_waitcnt vmcnt(2)")
    for sp in range(2):
        for r in range(4):
            a("v_lshl_or_b32 v%d, v%d, 16, v%d" % (40 + 4 * sp + r, 24 + 8 * sp + 2 * r + 1, 24 + 8 * sp + 2 * r))
    a("s_add_u32 s21, s21, 0x2000")
    a("buffer_store_dwordx4 v[40:43], v18, s[24:27], s21 offen")
    a("buffer_store_dwordx4 v[44:47], v18, s[24:27], s21 offen offset:1024")
    k0_prefetch(a, v)
    k0_stamp_out(a, v)
    a("L_k0_end:")
    a("s_endpgm")
    return kernel_desc(name, 64, 56, 64), "; @launch kernel=%s grid=(320,1,1) block=(256,1,1) lds=256" % name
```

```python
from asmlib import *
from k0 import *

from gemm41 import *

def pf_ops(v, srdreg, share, widx, voff, dst, stmp):
    st = v.get("pfs", 128); span = 64 * st
    l = [["s_mul_i32 %s, %s, %d" % (stmp, widx, share)]]
    n = -(-share // span)
    for i in range(n):
        op = "buffer_load_dwordx4 v[%d:%d]" % (dst, dst + 3) if st == 16 else "buffer_load_dword v%d" % dst
        l.append(["%s, v%d, s[%d:%d], %s offen" % (op, voff, srdreg, srdreg + 3, stmp)] + (["s_add_u32 %s, %s, %d" % (stmp, stmp, span)] if i + 1 < n else []))
    return l, n

def gen_a_path(a, v):
    srd(a, 16, 4, 1024 * 4096 * 2)
    srd(a, 20, 8, 4 << 20, WS_XN)
    STR = 8192
    a("v_lshrrev_b32 v3, 5, v1")
    a("v_lshl_add_u32 v3, v3, 2, v2")
    a("v_lshlrev_b32 v4, 13, v3")
    a("v_and_b32 v3, 31, v1")
    a("v_lshl_add_u32 v4, v3, 4, v4")
    a("s_lshl_b32 s15, s14, 9")
    a("v_add_u32 v4, s15, v4")
    for q in range(1, 4):
        a("v_add_u32 v%d, 0x%x, v%d" % (4 + q, 8 * STR - QST, 3 + q))
    gemm41_setup(a, 16)
    KVB = 32768
    def pro(a):
        a("s_load_dwordx2 s[40:41], s[0:1], 56")
        a("s_load_dwordx2 s[42:43], s[0:1], 32")
        a("s_load_dwordx2 s[60:61], s[0:1], 72")
        srd(a, 24, 8, 1 << 20, WS_KV)
        srd(a, 28, 8, 16 << 20, WS_O)
        a("v_lshlrev_b32 v11, 4, v1")
        a("v_lshl_add_u32 v12, v2, 12, v11")
        a("v_add_u32 v11, %d, v11" % (5 * 16384))
        a("s_lshl_b32 s36, s10, 12")
        a("s_add_u32 s36, s36, %d" % KVB)
        a("s_lshr_b32 s34, s14, 2")
        a("s_lshl_b32 s34, s34, 18")
        a("s_mov_b32 s38, %d" % (5 * 16384))
        a("s_and_b32 s39, s12, 15")
        a("s_lshl_b32 s39, s39, 2")
        a("s_add_u32 s39, s39, s10")
        a("s_and_b32 s62, s39, 3")
        a("s_and_b32 s63, s13, 4")
        a("s_add_u32 s62, s62, s63")
        a("s_bfe_u32 s63, s39, 0x30002")
        a("s_lshl_b32 s63, s63, 5")
        a("v_and_b32 v13, 31, v1")
        a("v_add_u32 v13, s63, v13")
        a("v_lshlrev_b32 v13, 12, v13")
        a("v_lshrrev_b32 v3, 5, v1")
        a("v_lshl_add_u32 v13, v3, 30, v13")
        a("s_lshr_b32 s63, s39, 5")
        a("s_lshl_b32 s63, s63, 7")
        a("s_lshl_b32 s15, s62, 9")
        if v.get("rotg"): a("s_add_u32 s63, s63, s15")
        a("s_lshl_b32 s62, s62, 20")
        a("v_lshlrev_b32 v14, 7, v1")
        a("v_cmp_lt_u32 vcc, 12, v1")
        a("v_mov_b32 v3, 0x40000000")
        a("s_and_b32 s39, s2, 127")
        a("s_lshl_b32 s39, s39, 2")
        a("v_cndmask_b32 v15, v14, v3, vcc")
        a("s_add_u32 s39, s39, s10")
        a("s_waitcnt lgkmcnt(0)")
        srd(a, 44, 40, 8 << 20)
        a("s_cmp_lt_u32 s39, 337")
        a("s_cselect_b32 s48, s42, s60")
        a("s_cselect_b32 s49, s43, s61")
        a("s_mov_b32 s15, 0x%x" % (1792 * 2048))
        a("s_cselect_b32 s50, 0x%x, s15" % (8 << 20))
        a("s_mov_b32 s51, 0x00020000")
        a("s_cselect_b32 s15, 0, 337")
        a("s_sub_u32 s39, s39, s15")
        a("s_mul_i32 s39, s39, %d" % (15 * 1664))
    kvdma = [["s_add_u32 m0, s36, s38"]] + [["buffer_load_dwordx4 v12, s[24:27], s34 offen offset:%d lds" % (1024 * q)] for q in range(4)] + \
            [["s_add_u32 s34, s34, 0x4000", "s_add_u32 s38, s38, 0x4000", "s_and_b32 s38, s38, 0x1ffff"]]
    pfS = [["s_and_b32 s15, s63, 0xfff", "s_or_b32 s15, s15, s62"],
           ["buffer_load_dword v3, v13, s[44:47], s15 offen", "s_add_u32 s63, s63, 256"]] if v.get("pf3") else []
    KR, VR_, S0, P0, QB, LS = 16, 48, [80, 96], [112, 120], 128, 4
    kreads = lambda: ["ds_read_b128 v[%d:%d], v11 offset:%d" % (KR + 4 * ks, KR + 4 * ks + 3, KVB + ks * 1024) for ks in range(8)]
    vreads = lambda: ["ds_read_b128 v[%d:%d], v11 offset:%d" % (VR_ + 4 * (dt * 2 + sp), VR_ + 4 * (dt * 2 + sp) + 3,
                      KVB + 8192 + (dt * 2 + sp) * 1024) for sp in range(2) for dt in range(4)]
    qacc = lambda i, j: ((i >> 3) * 2 + (j >> 1)) * 64 + ((i & 7) * 2 + (j & 1)) * 4
    extra = {"pro": pro, 27: [("KV0", kvdma)], 28: [("KV1", kvdma)], 29: [("KV2", kvdma), ("P", pfS)], 30: [("P", pfS + pfS)],
             31: [("KV3", kvdma), ("KV4", kvdma), ("KV5", kvdma), ("KV6", kvdma)]}
    seq = gemm41(a, v, 16, STR, qacc, "L_a_q", extra, kreads() + vreads(), {31: ["KV0"]})
    stamp(a, 2, v)
    qf = lambda jp, i: QB + (jp * 8 + i) * 4
    for r in range(4): a("v_mov_b32 v%d, 0" % (LS + r))
    a("v_add_u32 v11, 0x4000, v11")
    a("s_nop 7")
    pend = []
    n = 0
    for jp in range(4):
        for i in range(8):
            t = 80 + 8 * (n & 1); F = qf(jp, i); n += 1
            for r in range(8): a("v_accvgpr_read_b32 v%d, a%d" % (t + r, jp * 64 + i * 8 + r))
            a.ext(pend)
            for r in range(4): a("v_cvt_pk_bf16_f32 v%d, v%d, v%d" % (F + r, t + 2 * r, t + 2 * r + 1))
            pend = ["v_permlane16_swap_b32 v%d, v%d" % (F, F + 2), "v_permlane16_swap_b32 v%d, v%d" % (F + 1, F + 3)]
    a("s_nop 1")
    a.ext(pend)
    a("s_waitcnt lgkmcnt(0)")
    a("s_nop 1")
    stamp(a, 3, v)
    def QK(qg):
        return [mf32(S0[qg & 1], vr(KR + 4 * ks, 4), vr(qf(qg, ks), 4), "0" if ks == 0 else None, "v") for ks in range(8)]
    def PV(qg, first=False):
        return [mf32(qg * 64 + dt * 16, vr(VR_ + 4 * (dt * 2 + sp), 4), vr(P0[qg & 1] + 4 * sp, 4),
                     "0" if (first and sp == 0) else None) for sp in range(2) for dt in range(4)]
    def softmax_ops(qg):
        S = S0[qg & 1]; P = P0[qg & 1]; ops = []
        for k in range(0, 16, 2):
            ops += [("v_exp_f32 v%d, v%d" % (S + k, S + k), 8), ("v_exp_f32 v%d, v%d" % (S + k + 1, S + k + 1), 8),
                    ("v_add_f32 v%d, v%d, v%d" % (LS + qg, LS + qg, S + k), 4),
                    ("v_add_f32 v%d, v%d, v%d" % (LS + qg, LS + qg, S + k + 1), 4),
                    ("v_cvt_pk_bf16_f32 v%d, v%d, v%d" % (P + k // 2, S + k, S + k + 1), 4)]
        return ops
    CAP = v.get("cap", 20)
    def place(ops, gaps):
        d = {}; gi = 0; used = 0
        for s, c in ops:
            if used + c > CAP and gi + 1 < len(gaps):
                gi += 1; used = 0
            d.setdefault(gaps[gi], []).append(s); used += c
        return d
    def slab_body(first=False, last=False):
        blocks = [QK(1), PV(0, first), QK(2), PV(1, first), QK(3), PV(2, first), [] if last else QK(0), PV(3, first)]
        fill = [dict() for _ in range(8)]
        def add(d):
            for (b, g), l in d.items(): fill[b].setdefault(g, []); fill[b][g] += l
        so = softmax_ops(0)
        g_pv = lambda b: [(b, g) for g in range(2, 8)]
        g_qk = lambda b: [(b, g) for g in range(0, 7)]
        d0 = place(so, g_pv(7) + g_qk(0))
        add({k: l for k, l in d0.items() if k[0] == 0})
        add(place(softmax_ops(1), g_pv(1) + g_qk(2)))
        add(place(softmax_ops(2), g_pv(3) + g_qk(4)))
        if not last:
            add(place(softmax_ops(3), g_pv(5) + g_qk(6)))
            add({k: l for k, l in d0.items() if k[0] == 7})
            for g, s in enumerate(kreads()): fill[4].setdefault(g, []).insert(0, s)
            for g, s in enumerate(vreads()): fill[7].setdefault(g, []).insert(0, s)
            fill[5].setdefault(7, []).append("s_waitcnt lgkmcnt(0)")
            pfW = [["buffer_load_dword v3, v15, s[48:51], s39 offen", "s_add_u32 s39, s39, 1664"]] if v.get("pf1") else []
            dm = kvdma + pfS + pfW
            spots = [(1, 0), (1, 1), (3, 0), (3, 1), (5, 0), (5, 1)] + [(7, 0), (7, 1)][:len(pfS)] + [(0, 7)][:len(pfW)]
            for (b, g), l in zip(spots, dm):
                fill[b].setdefault(g, []); fill[b][g] += l
        else:
            fill[5].setdefault(7, [])
            fill[5][7] += ["s_nop 7"] + [s for s, c in softmax_ops(3)] + ["s_nop 1"]
        if not first:
            fill[0].setdefault(7, []).append("s_waitcnt lgkmcnt(0)")
            if not last:
                fill[1].setdefault(0, []).insert(0, "v_add_u32 v11, 0x4000, v11")
                fill[1].setdefault(1, []).insert(0, "v_and_b32 v11, 0x1ffff, v11")
        sq = list(seq); cnts = []
        for i in range(15):
            cnts.append(len(sq) - 1 - max(k for k, t in enumerate(sq) if t == "KV%d" % (i + 1)))
            sq += ["P"] * bool(v.get("pf1")) + ["KV%d" % (i + 7)] * 4 + ["P"] * bool(v.get("pf3"))
        out = [] if last else ["s_waitcnt vmcnt(%d)" % (cnts[0] if first else min(cnts[1:])), "s_barrier"]
        for b in range(8): out += interleave(blocks[b], fill[b])
        return out, [l for k, l in sorted(d0.items()) if k[0] == 7]
    body0, pre = slab_body(first=True)
    a.ext(QK(0))
    a("s_nop 15")
    a.ext(flat(pre))
    a.ext(body0)
    a("s_mov_b32 s37, 14")
    a(".p2align 6")
    a("L_a_aloop:")
    a.ext(slab_body()[0])
    a("s_sub_u32 s37, s37, 1")
    a("s_cmp_lg_u32 s37, 0")
    a("s_cbranch_scc1 L_a_aloop")
    a.ext(slab_body(last=True)[0])
    stamp(a, 4, v)
    for q in range(4): a("v_mov_b32 v%d, v%d" % (16 + q, LS + q))
    a("s_nop 1")
    for q in range(4): a("v_permlane32_swap_b32 v%d, v%d" % (LS + q, 16 + q))
    a("s_nop 1")
    for q in range(4): a("v_add_f32 v%d, v%d, v%d" % (LS + q, LS + q, 16 + q))
    if not v.get("nofallback"):
        a("v_min3_f32 v16, v4, v5, v6")
        a("v_max3_f32 v17, v4, v5, v6")
        a("v_min_f32 v16, v16, v7")
        a("v_max_f32 v17, v17, v7")
        a("v_add_f32 v18, v4, v5")
        a("v_add_f32 v19, v6, v7")
        a("v_add_f32 v18, v18, v19")
        a("v_cmp_gt_f32 vcc, 0x%x, v16" % f2u(2.0 ** (v.get("lo", -64))))
        a("s_mov_b64 s[40:41], vcc")
        a("v_cmp_lt_f32 vcc, 0x%x, v17" % f2u(2.0 ** (v.get("hi", 64))))
        a("s_or_b64 s[40:41], s[40:41], vcc")
        a("v_cmp_u_f32 vcc, v18, v18")
        a("s_or_b64 s[40:41], s[40:41], vcc")
        a("s_cmp_lg_u64 s[40:41], 0")
        a("s_cbranch_scc1 L_a_fallback")
    a("L_a_final:")
    for q in range(4): a("v_rcp_f32 v%d, v%d" % (16 + 2 * q, LS + q))
    a("s_lshl_b32 s40, s10, 1")
    a("s_lshl_b32 s41, s13, 3")
    a("s_add_u32 s40, s40, s41")
    a("s_lshl_b32 s40, s40, 18")
    a("s_lshl_b32 s41, s14, 14")
    a("s_add_u32 s40, s40, s41")
    a("s_waitcnt vmcnt(0)")
    a("v_lshlrev_b32 v3, 4, v1")
    n = 0
    for qg in range(4):
        for f in range(8):
            t = 32 + 16 * (n % 3); n += 1
            for r in range(8): a("v_accvgpr_read_b32 v%d, a%d" % (t + r, qg * 64 + f * 8 + r))
            for r in range(4):
                a("v_pk_mul_f32 v[%d:%d], v[%d:%d], v[%d:%d] op_sel_hi:[1,0]" % (t + 2 * r, t + 2 * r + 1, t + 2 * r, t + 2 * r + 1, 16 + 2 * qg, 17 + 2 * qg))
            for r in range(4): a("v_cvt_pk_bf16_f32 v%d, v%d, v%d" % (t + 8 + r, t + 2 * r, t + 2 * r + 1))
            a("buffer_store_dwordx4 v[%d:%d], v3, s[28:31], s40 offen offset:%d" % (t + 8, t + 11, 1024 * (f & 3)))
            if f == 3: a("s_add_u32 s40, s40, 4096")
            if f == 7 and qg < 3:
                d = 262144 - 4096 if qg != 1 else 8192 - 262144 - 4096
                a("s_add_u32 s40, s40, %d" % d if d > 0 else "s_sub_u32 s40, s40, %d" % -d)
    if v.get("stamps"): a("s_waitcnt vmcnt(0)")
    stamp(a, 5, v)
    stamps_out(a, v, 6, "L_a_st")
    a("s_endpgm")
    if v.get("nofallback"): return
    a("L_a_fallback:")
    a("v_lshlrev_b32 v3, 4, v1")
    a("s_lshr_b32 s34, s14, 2")
    a("s_lshl_b32 s34, s34, 18")
    MX = 112
    for q in range(4): a("v_mov_b32 v%d, 0xff800000" % (MX + q))
    a("s_waitcnt vmcnt(0)")
    a("s_mov_b32 s37, 0")
    def kload(so):
        for ks in range(8):
            if ks == 4: a("s_add_u32 s39, %s, 4096" % so)
            a("buffer_load_dwordx4 v[%d:%d], v3, s[24:27], %s offen offset:%d" % (KR + 4 * ks, KR + 4 * ks + 3, so if ks < 4 else "s39", 1024 * (ks & 3)))
    a("L_a_fb1:")
    a("s_add_u32 s38, s34, s37")
    kload("s38")
    a("s_waitcnt vmcnt(0)")
    for qg in range(4):
        a.ext(QK(qg))
        a("s_nop 15")
        S = S0[qg & 1]
        for k in range(0, 16, 2): a("v_max3_f32 v%d, v%d, v%d, v%d" % (MX + qg, MX + qg, S + k, S + k + 1))
        a("s_nop 1")
    a("s_add_u32 s37, s37, 0x4000")
    a("s_cmp_lg_u32 s37, 0x40000")
    a("s_cbranch_scc1 L_a_fb1")
    for q in range(4): a("v_mov_b32 v%d, v%d" % (MX + 4 + q, MX + q))
    a("s_nop 1")
    for q in range(4): a("v_permlane32_swap_b32 v%d, v%d" % (MX + q, MX + 4 + q))
    a("s_nop 1")
    for q in range(4): a("v_max_f32 v%d, v%d, v%d" % (12 + q, MX + q, MX + 4 + q))
    for q in range(4): a("v_mov_b32 v%d, 0" % (LS + q))
    for r in range(256): a("v_accvgpr_write_b32 a%d, 0" % r)
    a("s_mov_b32 s37, 0")
    a("L_a_fb2:")
    a("s_add_u32 s38, s34, s37")
    kload("s38")
    for f in range(8):
        if f % 4 == 0: a("s_add_u32 s39, s38, %d" % (8192 + 1024 * f))
        a("buffer_load_dwordx4 v[%d:%d], v3, s[24:27], s39 offen offset:%d" % (VR_ + 4 * f, VR_ + 4 * f + 3, 1024 * (f & 3)))
    a("s_waitcnt vmcnt(0)")
    for qg in range(4):
        a.ext(QK(qg))
        a("s_nop 15")
        S = S0[qg & 1]
        for k in range(16): a("v_sub_f32 v%d, v%d, v%d" % (S + k, S + k, 12 + qg))
        a.ext([s for s, c in softmax_ops(qg)])
        a("s_nop 1")
        a.ext(PV(qg))
    a("s_add_u32 s37, s37, 0x4000")
    a("s_cmp_lg_u32 s37, 0x40000")
    a("s_cbranch_scc1 L_a_fb2")
    for q in range(4): a("v_mov_b32 v%d, v%d" % (16 + q, LS + q))
    a("s_nop 1")
    for q in range(4): a("v_permlane32_swap_b32 v%d, v%d" % (LS + q, 16 + q))
    a("s_nop 1")
    for q in range(4): a("v_add_f32 v%d, v%d, v%d" % (LS + q, LS + q, 16 + q))
    a("s_nop 7")
    a("s_branch L_a_final")
```

```python
from asmlib import *
from k0 import *
from k1a import *
import math

ST_STATS = WS_ST
ST_FLAGS = WS_ST + (256 << 10)
ZSTAGE = 28672
GELU_C1 = -2.0 * math.sqrt(2.0 / math.pi) * math.log2(math.e)
GELU_C2 = GELU_C1 * 0.044715
POLL_MAX = 1 << 16

def gelu_tile(x, t, acc, stats=None):
    P = lambda r: "v[%d:%d]" % (r, r + 1)
    o = ["v_accvgpr_read_b32 v%d, a%d" % (x + r, acc + r) for r in range(4)]
    for h in (0, 2): o.append("v_pk_mul_f32 %s, %s, %s" % (P(t + h), P(x + h), P(x + h)))
    for h in (0, 2): o.append("v_pk_fma_f32 %s, %s, s[60:61], s[60:61] op_sel:[0,0,1] op_sel_hi:[1,0,1]" % (P(t + h), P(t + h)))
    for h in (0, 2): o.append("v_pk_mul_f32 %s, %s, %s" % (P(t + h), P(t + h), P(x + h)))
    for r in range(4): o.append("v_exp_f32 v%d, v%d" % (t + r, t + r))
    for h in (0, 2): o.append("v_pk_add_f32 %s, %s, 1.0 op_sel_hi:[1,0]" % (P(t + h), P(t + h)))
    for r in range(4): o.append("v_rcp_f32 v%d, v%d" % (t + r, t + r))
    for h in (0, 2): o.append("v_pk_mul_f32 %s, %s, %s" % (P(x + h), P(x + h), P(t + h)))
    if stats is not None:
        for h in (0, 2):
            o.append("v_pk_add_f32 %s, %s, %s" % (P(stats), P(stats), P(x + h)))
            o.append("v_pk_fma_f32 %s, %s, %s, %s" % (P(stats + 2), P(x + h), P(x + h), P(stats + 2)))
    return o

def gen_b_path(a, v):
    a("s_load_dwordx4 s[40:43], s[0:1], 56")
    srd(a, 16, 6, 1024 * 3584 * 2)
    srd(a, 20, 8, 4 << 20, WS_XN)
    STR = 7168
    a("v_lshrrev_b32 v3, 5, v1")
    a("v_lshl_add_u32 v3, v3, 2, v2")
    a("v_mul_u32_u24 v4, %d, v3" % STR)
    a("v_and_b32 v3, 31, v1")
    a("v_lshl_add_u32 v4, v3, 4, v4")
    a("s_mul_i32 s15, s14, 224")
    a("v_add_u32 v4, s15, v4")
    a("v_add_u32 v5, %d, v4" % (3584 - 224))
    a("v_cmp_lt_u32 vcc, 13, v3")
    a("s_nop 1")
    a("v_cndmask_b32 v4, v4, v5, vcc")
    a("v_mov_b32 v5, 0x40000000")
    a("v_cmp_lt_u32 vcc, 27, v3")
    a("s_nop 1")
    a("v_cndmask_b32 v4, v4, v5, vcc")
    for q in range(1, 4):
        a("v_add_u32 v%d, 0x%x, v%d" % (4 + q, 8 * STR - QST, 3 + q))
    gemm41_setup(a, 14)
    def pro(a):
        a("s_waitcnt lgkmcnt(0)")
        srd(a, 44, 40, 2048 * 2048 * 2)
        srd(a, 52, 42, 4096)
        srd(a, 24, 8, 7 << 20, WS_Z2)
        srd(a, 28, 8, 7 << 20, WS_H)
        srd(a, 48, 8, (256 << 10) + 2048, ST_STATS)
        a("s_mov_b32 s60, 0x%x" % f2u(GELU_C2))
        a("s_mov_b32 s61, 0x%x" % f2u(GELU_C1))
        a.ext(pre)
    zacc = lambda i, j: (i * 4 + j) * 4
    SBASE = 65536
    def dmaS(loop=False):
        l = []
        for hf in range(2):
            l.append(["s_add_u32 m0, s39, %d" % (4096 * hf)] + ([] if loop else ["s_nop 0"]))
            l += [["buffer_load_dwordx4 v%d, s[44:47], s%d offen offset:%d lds" % (12 + q, 62 + hf, 1024 * q)] for q in range(4)]
        l.append(["s_add_u32 s62, s62, 128", "s_add_u32 s63, s63, 128"])
        l.append(["s_add_u32 s39, s39, 32768", "s_cmp_ge_u32 s39, %d" % (SBASE + 3 * 32768)])
        l.append(["s_cselect_b32 s15, %d, 0" % (3 * 32768), "s_sub_u32 s39, s39, s15"])
        return l
    pre = ["v_lshrrev_b32 v3, 3, v1",
           "v_lshl_add_u32 v12, v2, 6, v3",
           "v_lshlrev_b32 v12, 12, v12",
           "v_bfe_u32 v3, v1, 4, 1",
           "v_and_b32 v13, 7, v1",
           "v_xor_b32 v3, v3, v13",
           "v_xor_b32 v13, 6, v3",
           "v_lshl_add_u32 v13, v13, 4, v12",
           "v_lshl_add_u32 v12, v3, 4, v12",
           "v_add_u32 v13, %d, v13" % (8 * 4096 - 1024),
           "v_add_u32 v14, %d, v12" % (16 * 4096 - 2048),
           "v_add_u32 v15, %d, v13" % (16 * 4096 - 2048),
           "s_lshl_b32 s62, s13, 20",
           "s_add_u32 s63, s62, %d" % (32 * 4096),
           "s_lshl_b32 s39, s10, 13",
           "s_add_u32 s39, s39, %d" % SBASE]
    extra = {"pro": pro, 31: [("S0", dmaS(True)), ("S1", dmaS(True)), ("S2", dmaS(True))]}
    gemm41(a, v, 14, STR, zacc, "L_b_z", extra)
    stamp(a, 2, v)
    GZ2, GZ1 = 16, 144
    a("v_and_b32 v3, 15, v1")
    a("v_lshl_add_u32 v3, v2, 6, v3")
    a("v_lshlrev_b32 v3, 1, v3")
    a("s_lshl_b32 s15, s13, 9")
    for j in range(4): a("buffer_load_ushort v%d, v3, s[52:55], s15 offen offset:%d" % (4 + j, 32 * j))
    STA = 144
    for r in range(16): a("v_mov_b32 v%d, 0" % (STA + r))
    n = 0
    for i in range(7):
        for j in range(4):
            a.ext(gelu_tile(GZ2 + zacc(i, j), 128 + 4 * (n & 1), 112 + zacc(i, j), STA + 4 * j)); n += 1
    for j in range(4):
        a("v_add_f32 v%d, v%d, v%d" % (STA + 4 * j, STA + 4 * j, STA + 4 * j + 1))
        a("v_add_f32 v%d, v%d, v%d" % (STA + 4 * j + 2, STA + 4 * j + 2, STA + 4 * j + 3))
    a("s_nop 1")
    for o in (0, 2):
        a("v_permlane32_swap_b32 v%d, v%d" % (STA + o, STA + 8 + o))
        a("v_permlane32_swap_b32 v%d, v%d" % (STA + 4 + o, STA + 12 + o))
    a("s_nop 1")
    for o in (0, 2):
        a("v_add_f32 v%d, v%d, v%d" % (STA + o, STA + o, STA + 8 + o))
        a("v_add_f32 v%d, v%d, v%d" % (STA + 4 + o, STA + 4 + o, STA + 12 + o))
    a("s_nop 1")
    for o in (0, 2): a("v_permlane16_swap_b32 v%d, v%d" % (STA + o, STA + 4 + o))
    a("s_nop 1")
    a("v_add_f32 v%d, v%d, v%d" % (132, STA, STA + 4))
    a("v_add_f32 v%d, v%d, v%d" % (133, STA + 2, STA + 6))
    a("v_lshlrev_b32 v10, 3, v0")
    a("s_lshl_b32 s34, s13, 15")
    a("s_lshl_b32 s15, s14, 11")
    a("s_add_u32 s15, s15, s34")
    a("buffer_store_dwordx2 v[132:133], v10, s[48:51], s15 offen sc1")
    a("s_nop 1")
    for i in range(7):
        for j in range(4):
            a.ext(gelu_tile(GZ1 + zacc(i, j), 136 + 4 * (n & 1), zacc(i, j))); n += 1
    stamp(a, 3, v)
    a("s_mov_b32 s37, 0")
    a("L_b_poll1:")
    a("s_mov_b32 s15, s34")
    for f in range(16):
        a("buffer_load_dwordx2 a[%d:%d], v10, s[48:51], s15 offen offset:%d sc1" % (224 + 2 * f, 225 + 2 * f, 2048 * (f & 1)))
        if f & 1: a("s_add_u32 s15, s15, 4096")
    a("s_waitcnt vmcnt(0)")
    a("v_accvgpr_read_b32 v128, a224")
    a("v_accvgpr_read_b32 v129, a225")
    a("v_mov_b32 v130, v129")
    for f in range(1, 16):
        t = 132 + 2 * (f & 1)
        a("v_accvgpr_read_b32 v%d, a%d" % (t, 224 + 2 * f))
        a("v_accvgpr_read_b32 v%d, a%d" % (t + 1, 225 + 2 * f))
        a("v_add_f32 v128, v128, v%d" % t)
        a("v_add_f32 v129, v129, v%d" % (t + 1))
        a("v_max_u32 v130, v130, v%d" % (t + 1))
    a("v_cmp_eq_u32 vcc, -1, v130")
    a("s_add_u32 s37, s37, 1")
    a("s_cmp_ge_u32 s37, %d" % POLL_MAX)
    a("s_cbranch_scc1 L_b_poll1_done")
    a("s_cbranch_vccnz L_b_poll1")
    a("L_b_poll1_done:")
    a("v_mul_f32 v128, 0x%x, v128" % f2u(1 / 1792))
    a("v_mul_f32 v129, 0x%x, v129" % f2u(1 / 1792))
    a("v_fma_f32 v129, -v128, v128, v129")
    a("v_max_f32 v129, 0, v129")
    bf16_round(a, 128); bf16_round(a, 129)
    a("v_add_f32 v129, 0x%x, v129" % f2u(1e-5))
    bf16_round(a, 129)
    a("v_sqrt_f32 v129, v129")
    a("s_nop 0")
    bf16_round(a, 129)
    a("v_rcp_f32 v129, v129")
    a("v_and_b32 v3, 15, v1")
    a("v_mul_f32 v128, v128, v129")
    a("v_sub_f32 v128, 0, v128")
    a("v_lshlrev_b32 v3, 2, v3")
    for j in range(4):
        a("ds_bpermute_b32 v%d, v3, v129 offset:%d" % (132 + 2 * j, 64 * j))
        a("ds_bpermute_b32 v%d, v3, v128 offset:%d" % (133 + 2 * j, 64 * j))
    a("v_bfe_u32 v11, v1, 2, 2")
    a("v_lshlrev_b32 v11, 8, v11")
    a("v_lshrrev_b32 v3, 4, v1")
    a("v_lshl_add_u32 v11, v3, 6, v11")
    a("v_and_b32 v3, 3, v1")
    a("v_lshl_add_u32 v11, v3, 4, v11")
    a("s_mul_i32 s33, s14, %d" % (64 * 7168))
    a("s_lshl_b32 s15, s13, 2")
    a("s_add_u32 s15, s15, s10")
    a("s_mul_i32 s15, s15, %d" % (2 * 7168))
    a("s_add_u32 s15, s15, s33")
    a("s_waitcnt lgkmcnt(0)")
    n = 0
    for kk in range(2):
        for i in range(7):
            o = 128 if n & 1 == 0 else 140; n += 1
            for d in range(2):
                j = 2 * kk + d; x = GZ2 + zacc(i, j)
                for h in (0, 2):
                    a("v_pk_fma_f32 v[%d:%d], v[%d:%d], v[%d:%d], v[%d:%d] op_sel:[0,0,1] op_sel_hi:[1,0,1]" % (
                        x + h, x + h + 1, x + h, x + h + 1, 132 + 2 * j, 133 + 2 * j, 132 + 2 * j, 133 + 2 * j))
                for h in (0, 2):
                    a("v_cvt_pk_bf16_f32 v%d, v%d, v%d" % (o + 2 * d + h // 2, x + h, x + h + 1))
            p = kk * 7 + i
            a("buffer_store_dwordx4 v[%d:%d], v11, s[24:27], s15 offen offset:%d sc1" % (o, o + 3, 1024 * (p & 3)))
            if p & 3 == 3: a("s_add_u32 s15, s15, 4096")
    for j in range(4): a("v_lshlrev_b32 v%d, 16, v%d" % (4 + j, 4 + j))
    for i in range(7):
        for j in range(4):
            for e in range(4): a("v_accvgpr_write_b32 a%d, v%d" % (112 + zacc(i, j) + e, 4 + j))
    a("v_lshrrev_b32 v9, 5, v1")
    a("v_lshlrev_b32 v9, 9, v9")
    a("v_and_b32 v3, 3, v1")
    a("v_lshl_add_u32 v9, v3, 6, v9")
    a("v_bfe_u32 v3, v1, 2, 2")
    a("v_lshl_add_u32 v9, v3, 4, v9")
    a("v_bfe_u32 v3, v1, 4, 1")
    a("v_lshl_add_u32 v9, v3, 3, v9")
    a("s_lshl_b32 s35, s10, 12")
    a("s_cmp_eq_u32 s10, 3")
    a("s_cselect_b32 s15, 1024, 0")
    a("s_sub_u32 s15, s35, s15")
    a("v_lshlrev_b32 v8, 4, v1")
    a("v_add_u32 v8, s15, v8")
    a("s_cmp_ge_u32 s10, 2")
    a("s_cselect_b32 s15, 0x40000000, 0")
    a("v_add_u32 v5, s15, v8")
    a("v_bfe_u32 v3, v1, 4, 1")
    a("v_lshlrev_b32 v6, 1, v3")
    a("v_lshrrev_b32 v3, 5, v1")
    a("v_or_b32 v6, v6, v3")
    a("v_bfe_u32 v3, v1, 1, 1")
    a("v_xor_b32 v6, v6, v3")
    a("v_bfe_u32 v3, v1, 3, 1")
    a("v_mul_u32_u24 v3, 6, v3")
    a("v_xor_b32 v6, v6, v3")
    a("v_lshlrev_b32 v6, 4, v6")
    a("v_and_b32 v3, 15, v1")
    a("v_lshl_add_u32 v6, v3, 7, v6")
    a("v_lshl_add_u32 v6, v2, 13, v6")
    a("v_add_u32 v6, %d, v6" % SBASE)
    a("v_xor_b32 v7, 64, v6")
    a("s_lshl_b32 s15, s14, 7")
    a("s_add_u32 s36, s15, %d" % (256 << 10))
    a("s_lshl_b32 s15, s13, 4")
    a("s_lshl_b32 s38, s10, 2")
    a("s_add_u32 s15, s15, s38")
    a("s_add_u32 s15, s15, s36")
    a("v_mov_b32 v3, 0")
    a("v_mov_b32 v4, 1")
    a("s_waitcnt vmcnt(0)")
    a("s_mov_b64 exec, 1")
    a("buffer_store_dword v4, v3, s[48:51], s15 offen sc1")
    a("s_mov_b64 exec, -1")
    stamp(a, 4, v)
    a("v_and_b32 v3, 31, v1")
    a("v_lshlrev_b32 v3, 2, v3")
    a("s_mov_b32 s37, 0")
    a("L_b_poll2:")
    a("buffer_load_dword v4, v3, s[48:51], s36 offen sc1")
    a("s_waitcnt vmcnt(0)")
    a("v_cmp_ne_u32 vcc, 1, v4")
    a("s_add_u32 s37, s37, 1")
    a("s_cmp_ge_u32 s37, %d" % POLL_MAX)
    a("s_cbranch_scc1 L_b_poll2_done")
    a("s_cbranch_vccnz L_b_poll2")
    a("L_b_poll2_done:")
    a("s_barrier")
    stamp(a, 5, v)
    GA = [16, 44]; GB = [72, 88, 104, 120]
    def dmaZ(T, loop=False):
        l = [["s_add_u32 m0, s35, %d" % ((T & 3) * 16384)] + ([] if loop else ["s_nop 0"])]
        l += [["buffer_load_dwordx4 v%d, s[24:27], s33 offen offset:%d sc1 lds" % (8 if q < 3 else 5, 1024 * q)] for q in range(4)]
        l += [["s_add_u32 s33, s33, 14336"]]
        return l
    def greads(step):
        st = step & 1
        pos = lambda p: p + (1 if p >= 11 else 0)
        return ["ds_read_b64_tr_b16 v[%d:%d], v9 offset:%d" % (
            GA[st] + 4 * i + 2 * sec, GA[st] + 4 * i + 2 * sec + 1, ((step >> 1) & 3) * 16384 + pos((step & 1) * 7 + i) * 1024 + sec * 256)
            for i in range(7) for sec in range(2)]
    def breads(T):
        l = ["ds_read_b128 v[%d:%d], v%d offset:%d" % (GB[(2 * T + d) & 3] + 4 * j, GB[(2 * T + d) & 3] + 4 * j + 3, 136 + d, 2048 * j)
             for d in range(2) for j in range(4)]
        return l
    badv = ["v_add_u32 v136, s38, v6", "v_add_u32 v137, s38, v7", "s_add_u32 s38, s38, 32768",
            "s_cmp_eq_u32 s38, %d" % (3 * 32768), "s_cselect_b32 s38, 0, s38"]
    def gmf(s):
        return [mf16(112 + zacc(i, j), vr(GA[s & 1] + 4 * i, 4), vr(GB[s & 3] + 4 * j, 4)) for i, j in zig(7, 4)]
    a("s_mov_b32 s38, 0")
    for T in range(4): a.ext(flat(dmaZ(T)))
    a.ext(badv)
    a.ext(breads(0))
    a("s_waitcnt vmcnt(12)")
    a("s_barrier")
    a.ext(greads(0))
    seq = ["Z0"] * 4 + ["Z1"] * 4 + ["Z2"] * 4 + ["Z3"] * 4
    bodies = []; cur = []
    for s in range(64):
        T = (s + 1) // 2
        f = {}
        if s & 1:
            if s < 63:
                need = [t for t in ("Z%d" % T, "S%d" % T) if t in seq]
                vm = len(seq) - 1 - max(i for i, t in enumerate(seq) if t in need)
                cur += ["s_waitcnt vmcnt(%d) lgkmcnt(0)" % vm, "s_barrier"]
                g = greads(s + 1); b = breads(T)
                f = {-1: badv[:2]}
                f = merge(f, spread(g[:4] + b[:4] + g[4:] + b[4:], list(range(0, 22))))
                f = merge(f, {22: badv[2:3], 23: badv[3:]})
                if T + 3 < 32:
                    f = merge(f, spread(dmaZ(T + 3, True), [1, 3, 8, 13, 18, 24])); seq += ["Z%d" % (T + 3)] * 4
            else:
                cur += ["s_waitcnt lgkmcnt(0)"]
        else:
            cur += ["s_waitcnt lgkmcnt(0)"]
            f = spread(greads(s + 1), [0, 1, 2, 4, 6, 8, 10, 12, 14, 16, 18, 20, 21, 22])
            if T + 3 < 32:
                f = merge(f, spread(dmaS(True), [1, 3, 5, 7, 9, 11, 13, 15, 17, 19, 23, 24, 25])); seq += ["S%d" % (T + 3)] * 8
        cur += interleave(gmf(s), f)
        if s & 7 == 7: bodies.append(cur); cur = []
    roll(a, [ablate(b, v, "abG") for b in bodies], "L_b_g")
    stamp(a, 6, v)
    a("s_lshl_b32 s15, s13, 2")
    a("s_add_u32 s15, s15, s10")
    a("s_mul_i32 s15, s15, %d" % (4 * 57344))
    a("s_lshr_b32 s38, s14, 1")
    a("s_mul_i32 s38, s38, 7168")
    a("s_add_u32 s15, s15, s38")
    a("s_and_b32 s38, s14, 1")
    a("s_mul_i32 s39, s38, 3072")
    a("s_lshl_b32 s38, s38, 9")
    a("s_add_u32 s38, s38, s15")
    a("s_add_u32 s38, s38, 6144")
    a("s_add_u32 s15, s15, s39")
    a("v_lshlrev_b32 v3, 4, v1")
    a("v_lshlrev_b32 v4, 3, v1")
    a("s_nop 4")
    n = 0
    for j in range(4):
        for u in range(4):
            t = 16 + 16 * (n % 3); n += 1
            tiles = [2 * u, 2 * u + 1] if u < 3 else [6]
            for d, i in enumerate(tiles):
                for e in range(4): a("v_accvgpr_read_b32 v%d, a%d" % (t + 4 * d + e, 112 + zacc(i, j) + e))
            for d, i in enumerate(tiles):
                for h in (0, 2):
                    x = t + 4 * d + h; z = GZ1 + zacc(i, j) + h
                    a("v_pk_mul_f32 v[%d:%d], v[%d:%d], v[%d:%d]" % (x, x + 1, x, x + 1, z, z + 1))
            for r in range(2 * len(tiles)): a("v_cvt_pk_bf16_f32 v%d, v%d, v%d" % (t + 8 + r, t + 2 * r, t + 2 * r + 1))
            if u < 3: a("buffer_store_dwordx4 v[%d:%d], v3, s[28:31], s15 offen offset:%d" % (t + 8, t + 11, 1024 * u))
            else: a("buffer_store_dwordx2 v[%d:%d], v4, s[28:31], s38 offen" % (t + 8, t + 9))
        if j < 3:
            a("s_add_u32 s15, s15, 57344")
            a("s_add_u32 s38, s38, 57344")
    if v.get("stamps"): a("s_waitcnt vmcnt(0)")
    stamp(a, 7, v)
    stamps_out(a, v, 8, "L_b_st")
    a("s_endpgm")

def gen_k1(a, v, name="main_kernel"):
    kernel_head(a, name)
    a("s_cmp_ge_u32 s2, 256")
    a("s_cbranch_scc1 L_k1_end")
    stamp(a, 0, v)
    a("s_load_dwordx2 s[4:5], s[0:1], 24")
    a("s_load_dwordx2 s[6:7], s[0:1], 48")
    a("s_load_dwordx2 s[8:9], s[0:1], 96")
    a("v_and_b32 v1, 63, v0")
    a("v_lshrrev_b32 v2, 6, v0")
    a("s_and_b32 s11, s2, 7")
    a("v_readfirstlane_b32 s10, v2")
    a("s_lshr_b32 s12, s2, 3")
    a("s_and_b32 s13, s11, 1")
    a("s_lshl_b32 s13, s13, 2")
    a("s_and_b32 s14, s12, 3")
    a("s_add_u32 s13, s13, s14")
    a("s_lshr_b32 s14, s11, 1")
    a("s_lshl_b32 s14, s14, 2")
    a("s_bfe_u32 s15, s12, 0x20002")
    a("s_add_u32 s14, s14, s15")
    a("s_waitcnt lgkmcnt(0)")
    a("s_cmp_lt_u32 s12, 16")
    a("s_cbranch_scc1 L_k1_b")
    gen_a_path(a, v)
    a("L_k1_b:")
    gen_b_path(a, v)
    a("L_k1_end:")
    a("s_endpgm")
    return kernel_desc(name, 512, 102, 256), "; @launch kernel=%s grid=(256,1,1) block=(256,1,1) lds=%d" % (name, 163840)
```

```python
from asmlib import *
from k0 import *
from k1a import *
from k1b import ST_FLAGS, POLL_MAX
import math

PST = 1056
PSLOT = 8 * PST
WS_EX = WS_ST + (1 << 20)
ST_FLAG2 = ST_FLAGS + 2048
N1 = 88

def gen_stream(a, steps, R, lbl, inserts=None, v=None):
    FA = [16, 48]; FB0 = 80
    inserts = inserts or {}
    n = len(steps); D = R - 1
    def issue(s, loop):
        st = steps[s]; k = st["kind"]; slot = s % R; fb = FB0 + 8 * slot
        m0 = ["s_add_u32 m0, s38, %d" % (slot * PSLOT)] + ([] if loop else ["s_nop 0"])
        if k == "S":
            l = [m0, ["buffer_load_dwordx4 v4, s[16:19], s32 offen lds"],
                 ["buffer_load_dwordx4 v5, s[16:19], s32 offen offset:%d lds" % PST],
                 ["buffer_load_dwordx4 v[%d:%d], v10, s[20:23], s33 offen" % (fb, fb + 3), "s_add_u32 s32, s32, 0x10000"],
                 ["buffer_load_dwordx4 v[%d:%d], v10, s[20:23], s33 offen offset:256" % (fb + 4, fb + 7), "s_add_u32 s33, s33, 2048"]]
            cnt = 4
        else:
            u = st["u"]
            va, vb = ("v6", "v7") if k == "Y" else ("v8", "v9")
            rowb = lambda u: 32 * u if u < 3 else (112 + 32 * (u - 3) if u < 6 else 96)
            nxt = rowb(u + 1) - rowb(u) if u < 6 else 224 - 96
            l = [m0, ["buffer_load_dwordx4 %s, s[24:27], s34 offen lds" % va],
                 ["buffer_load_dwordx4 %s, s[24:27], s34 offen offset:%d lds" % (vb, PST),
                  ("s_add_u32 s34, s34, %d" % (nxt * 2048)) if nxt > 0 else ("s_sub_u32 s34, s34, %d" % (-nxt * 2048))]]
            if k == "Y":
                l += [["buffer_load_dwordx4 v[%d:%d], v11, s[28:31], s35 offen" % (fb, fb + 3), "s_add_u32 s35, s35, 1024"],
                      ["buffer_load_dwordx4 v[%d:%d], v11, s[28:31], s36 offen" % (fb + 4, fb + 7), "s_add_u32 s36, s36, 1024"]]
                cnt = 4
            else:
                l += [["buffer_load_dwordx2 v[%d:%d], v12, s[28:31], s35 offen" % (fb, fb + 1),
                       "buffer_load_dwordx2 v[%d:%d], v12, s[28:31], s35 offen offset:512" % (fb + 2, fb + 3), "s_add_u32 s35, s35, 1024"],
                      ["buffer_load_dwordx2 v[%d:%d], v12, s[28:31], s36 offen" % (fb + 4, fb + 5),
                       "buffer_load_dwordx2 v[%d:%d], v12, s[28:31], s36 offen offset:512" % (fb + 6, fb + 7), "s_add_u32 s36, s36, 1024"]]
                cnt = 6
        return l, cnt
    def reads(s):
        slot = s % R; st = s & 1
        va, off = ("v13", slot * PSLOT) if slot < 7 else ("v14", (slot - 7) * PSLOT)
        return ["ds_read_b64_tr_b16 v[%d:%d], %s offset:%d" % (FA[st] + 4 * i + 2 * sec, FA[st] + 4 * i + 2 * sec + 1, va,
                off + sec * 256 + i * 32) for i in range(8) for sec in range(2)]
    if v and (v.get("frzW") or v.get("frzB")):
        _issue = issue
        def issue(s, loop):
            l, c = _issue(s, loop)
            bad = (["s32", "s34"] if v.get("frzW") else []) + (["s33", "s35", "s36"] if v.get("frzB") else [])
            l = [[x for x in g if not (x.startswith("s_add_u32") or x.startswith("s_sub_u32")) or x.split()[1].rstrip(",") not in bad] for g in l]
            return l, c
    seq = []
    for s in range(D):
        l, c = issue(s, False); a.ext(flat(l)); seq += [s] * c
    def wait_for(smax):
        idx = [i for i, t in enumerate(seq) if t is not None and t <= smax]
        return min(63, len(seq) - 1 - max(idx))
    pro = inserts.get("pro")
    if pro: pro(a)
    a("s_waitcnt vmcnt(%d)" % wait_for(0))
    a("s_barrier")
    a.ext(reads(0))
    if v: stamp(a, 1, v)
    bodies = []; cur = []
    for s in range(n):
        st = steps[s]
        if s in inserts:
            lines, nv = inserts[s]
            cur += lines; seq += [None] * nv
        if s % 2 == 0:
            cur.append("s_waitcnt vmcnt(%d) lgkmcnt(0)" % wait_for(min(s + 2, n - 1)))
            if s + 1 < n: cur.append("s_barrier")
        else:
            cur.append("s_waitcnt lgkmcnt(0)")
        f = {}
        if s + 1 < n: f = spread(reads(s + 1), [0, 0, 1, 1, 2, 2, 3, 4, 5, 6, 7, 8, 9, 10, 11, 12])
        if s + D < n:
            l, c = issue(s + D, True); seq += [s + D] * c
            f = merge(f, spread(l, [3, 5, 8, 11, 13]))
        if st.get("extra"): f = merge(f, st["extra"])
        fb = FB0 + 8 * (s % R)
        mf = [mf16(st["acc"] + (i * 2 + j) * 4, vr(FA[s & 1] + 4 * i, 4), vr(fb + 4 * j, 4), "0" if st.get("first") else None)
              for i, j in zig(8, 2)]
        cur += interleave(mf, f)
        if (s + 1) % R == 0 or s == n - 1:
            bodies.append(cur); cur = []
    roll(a, [ablate(b, v or {}, "abP") for b in bodies], lbl)

def gen_k2(a, v, name="final_kernel"):
    n1 = v.get("n1", N1)
    kernel_head(a, name)
    a("s_cmp_ge_u32 s2, 256")
    a("s_cbranch_scc1 L_k2_end")
    stamp(a, 0, v)
    a("s_load_dwordx2 s[4:5], s[0:1], 32")
    a("s_load_dwordx4 s[40:43], s[0:1], 72")
    a("s_load_dwordx2 s[6:7], s[0:1], 0")
    a("s_load_dwordx2 s[8:9], s[0:1], 96")
    a("v_and_b32 v1, 63, v0")
    a("v_lshrrev_b32 v2, 6, v0")
    a("s_and_b32 s11, s2, 7")
    a("v_readfirstlane_b32 s10, v2")
    a("s_lshr_b32 s12, s2, 3")
    if v.get("xsep"):
        a("s_and_b32 s13, s11, 1")
        a("s_lshl_b32 s13, s13, 3")
        a("s_and_b32 s15, s12, 7")
        a("s_add_u32 s13, s13, s15")
        a("s_bfe_u32 s14, s11, 0x10001")
        a("s_lshl_b32 s14, s14, 2")
        a("s_lshr_b32 s15, s12, 3")
        a("s_add_u32 s14, s14, s15")
        a("s_lshr_b32 s54, s11, 2")
    else:
        a("s_lshr_b32 s13, s11, 1")
        a("s_lshl_b32 s13, s13, 2")
        a("s_and_b32 s15, s12, 3")
        a("s_add_u32 s13, s13, s15")
        a("s_and_b32 s14, s11, 1")
        a("s_lshl_b32 s14, s14, 2")
        a("s_bfe_u32 s15, s12, 0x20002")
        a("s_add_u32 s14, s14, s15")
        a("s_lshr_b32 s54, s2, 7")
    a("v_and_b32 v3, 15, v1")
    a("v_lshlrev_b32 v15, 4, v3")
    a("s_lshl_b32 s15, s14, 8")
    a("v_add_u32 v15, s15, v15")
    a("v_and_b32 v3, 1, v2")
    a("v_lshl_add_u32 v15, v3, 12, v15")
    a("v_lshrrev_b32 v16, 5, v1")
    a("v_bfe_u32 v17, v1, 4, 1")
    a("v_lshrrev_b32 v18, 1, v2")
    a("v_lshl_add_u32 v4, v16, 15, v15")
    a("v_lshl_add_u32 v4, v18, 14, v4")
    a("v_lshl_add_u32 v4, v17, 13, v4")
    a("v_add_u32 v5, %d, v4" % (2048 - PST))
    a("v_lshl_add_u32 v8, v16, 14, v15")
    a("v_lshl_add_u32 v8, v18, 13, v8")
    a("v_lshl_add_u32 v6, v17, 15, v8")
    a("v_add_u32 v7, %d, v6" % (2048 - PST))
    a("v_mul_u32_u24 v3, %d, v17" % (112 * 2048))
    a("v_add_u32 v8, v8, v3")
    a("v_add_u32 v9, %d, v8" % (2048 - PST))
    a("v_and_b32 v10, 15, v1")
    a("v_lshlrev_b32 v10, 4, v10")
    a("v_lshrrev_b32 v3, 4, v1")
    a("v_lshl_add_u32 v10, v3, 9, v10")
    a("v_lshlrev_b32 v11, 4, v1")
    a("v_lshlrev_b32 v12, 3, v1")
    a("v_bfe_u32 v3, v1, 2, 3")
    a("v_mul_u32_u24 v13, %d, v3" % PST)
    a("v_lshl_add_u32 v13, v16, 9, v13")
    a("v_and_b32 v3, 3, v1")
    a("v_lshl_add_u32 v13, v3, 3, v13")
    a("v_add_u32 v14, %d, v13" % (7 * PSLOT))
    a("s_mul_i32 s38, s10, %d" % (2 * PST))
    a("s_waitcnt lgkmcnt(0)")
    srd(a, 16, 4, 4096 * 1024 * 2)
    srd(a, 20, 8, 16 << 20, WS_O)
    srd(a, 24, 40, 1792 * 1024 * 2)
    srd(a, 28, 8, 7 << 20, WS_H)
    srd(a, 44, 8, 128 * 4 * 16384, WS_EX)
    srd(a, 48, 8, 2048, ST_FLAG2)
    a("s_lshl_b32 s15, s13, 2")
    a("s_add_u32 s15, s15, s10")
    a("s_lshl_b32 s33, s15, 18")
    a("s_mul_i32 s35, s15, %d" % (2 * 57344))
    a("s_add_u32 s36, s35, 57344")
    a("s_mov_b32 s34, 0")
    a("s_lshl_b32 s39, s13, 3")
    a("s_add_u32 s39, s39, s14")
    a("s_lshl_b32 s39, s39, 2")
    a("s_add_u32 s39, s39, s10")
    a("s_lshl_b32 s52, s39, 14")
    a("s_lshl_b32 s53, s39, 2")
    a("s_cmp_lg_u32 s54, 0")
    a("s_cbranch_scc1 L_k2_t2")
    a("s_mov_b32 s32, 0")
    steps = [dict(kind="S", acc=0, first=(s == 0)) for s in range(n1)]
    gen_stream(a, steps, v.get("r1", 14), "L_k2_a", None, v)
    stamp(a, 2, v)
    a("v_mov_b32 v3, 0")
    a("v_mov_b32 v4, 1")
    a("s_nop 5")
    for p in range(16):
        a("buffer_store_dwordx4 a[%d:%d], v11, s[44:47], s52 offen offset:%d sc1" % (4 * p, 4 * p + 3, 1024 * (p & 3)))
        if p & 3 == 3: a("s_add_u32 s52, s52, 4096")
    a("s_waitcnt vmcnt(0)")
    a("s_mov_b64 exec, 1")
    a("buffer_store_dword v4, v3, s[48:51], s53 offen sc1")
    a("s_mov_b64 exec, -1")
    stamp(a, 3, v)
    stamps_out(a, v, 4, "L_k2_st2", 49)
    a("s_endpgm")
    a("L_k2_t2:")
    a("s_mov_b32 s32, %d" % (n1 * 32 * 2048))
    a("s_add_u32 s33, s33, %d" % (n1 * 2048))
    a("s_mov_b32 s60, 0x%x" % f2u(-math.log2(math.e)))
    ns = 128 - n1
    GT = 192
    steps = [dict(kind="Y" if s % 7 < 6 else "YS", u=s % 7, acc=0, first=(s == 0)) for s in range(56)]
    steps += [dict(kind="S", acc=64, first=(s == 0)) for s in range(ns)]
    for q in range(32):
        x0, x1 = GT + 2 * q, GT + 2 * q + 1
        ex = {4: ["v_accvgpr_read_b32 v%d, a%d" % (x0, 2 * q)], 6: ["v_accvgpr_read_b32 v%d, a%d" % (x1, 2 * q + 1)],
              7: ["v_mul_f32 v2, s60, v%d" % x0], 9: ["v_mul_f32 v3, s60, v%d" % x1], 10: ["v_exp_f32 v2, v2"],
              12: ["v_exp_f32 v3, v3"], 13: ["v_add_f32 v2, 1.0, v2"], 14: ["v_add_f32 v3, 1.0, v3", "v_rcp_f32 v2, v2"],
              15: ["v_rcp_f32 v3, v3", "v_mul_f32 v%d, v%d, v2" % (x0, x0), "v_mul_f32 v%d, v%d, v3" % (x1, x1)]}
        steps[57 + q]["extra"] = ex
    gen_stream(a, steps, v.get("r2", 14), "L_k2_b", None, v)
    stamp(a, 2, v)
    srd(a, 16, 6, 2048 * 1024 * 2)
    srd(a, 20, 42, 2048 * 1024 * 2)
    a("v_and_b32 v6, 15, v1")
    a("v_lshrrev_b32 v7, 4, v1")
    a("v_lshlrev_b32 v5, 11, v7")
    a("v_lshl_add_u32 v5, v6, 4, v5")
    a("s_lshl_b32 s15, s13, 2")
    a("s_add_u32 s15, s15, s10")
    a("s_lshl_b32 s15, s15, 16")
    a("s_lshl_b32 s34, s14, 8")
    a("s_add_u32 s34, s34, s15")
    XR, XF, SP, AG = 144, 16, 80, 144
    a("s_mov_b32 s35, s34")
    for q in range(8):
        a("buffer_load_dwordx4 v[%d:%d], v5, s[16:19], s35 offen" % (XR + 4 * q, XR + 4 * q + 3))
        a("s_add_u32 s35, s35, 8192")
    a("s_mul_i32 s36, s10, 16896")
    a("v_mul_u32_u24 v8, 528, v6")
    a("v_lshl_add_u32 v8, v7, 4, v8")
    a("v_add_u32 v8, s36, v8")
    a("v_mul_u32_u24 v9, 528, v7")
    a("v_lshl_add_u32 v9, v6, 5, v9")
    a("v_add_u32 v9, s36, v9")
    a("s_waitcnt vmcnt(0)")
    for r in range(32):
        a("v_lshlrev_b32 v%d, 16, v%d" % (XF + 2 * r, XR + r))
        a("v_and_b32 v%d, 0xffff0000, v%d" % (XF + 2 * r + 1, XR + r))
    a("v_mov_b32 v3, 0")
    a("s_mov_b32 s37, 0")
    a("s_barrier")
    a("L_k2_poll:")
    a("buffer_load_dword v4, v3, s[48:51], s53 offen sc1")
    a("s_waitcnt vmcnt(0)")
    a("v_cmp_ne_u32 vcc, 1, v4")
    a("s_add_u32 s37, s37, 1")
    a("s_cmp_ge_u32 s37, %d" % POLL_MAX)
    a("s_cbranch_scc1 L_k2_poll_done")
    a("s_cbranch_vccnz L_k2_poll")
    a("L_k2_poll_done:")
    stamp(a, 3, v)
    for p in range(16):
        a("buffer_load_dwordx4 v[%d:%d], v11, s[44:47], s52 offen offset:%d sc1" % (SP + 4 * p, SP + 4 * p + 3, 1024 * (p & 3)))
        if p & 3 == 3: a("s_add_u32 s52, s52, 4096")
    P2 = lambda r: "v[%d:%d]" % (r, r + 1)
    for p in range(16):
        t = AG + 4 * (p & 7)
        for e in range(4): a("v_accvgpr_read_b32 v%d, a%d" % (t + e, 64 + 4 * p + e))
        a("s_waitcnt vmcnt(%d)" % (15 - p))
        for h in (0, 2): a("v_pk_add_f32 %s, %s, %s" % (P2(t + h), P2(t + h), P2(SP + 4 * p + h)))
        for h in (0, 2): a("v_pk_mul_f32 %s, %s, %s" % (P2(t + h), P2(t + h), P2(GT + 4 * p + h)))
        i, j = p >> 1, p & 1
        a("ds_write_b128 v8, v[%d:%d] offset:%d" % (t, t + 3, j * 16 * 528 + i * 64))
    a("s_waitcnt lgkmcnt(0)")
    for q in range(8):
        for h in range(2):
            a("ds_read_b128 v[%d:%d], v9 offset:%d" % (SP + 8 * q + 4 * h, SP + 8 * q + 4 * h + 3, q * 4 * 528 + 16 * h))
    for q in range(8):
        a("s_waitcnt lgkmcnt(%d)" % min(15, 14 - 2 * q))
        t = SP + 8 * q
        for r in range(4): a("v_pk_add_f32 %s, %s, %s" % (P2(t + 2 * r), P2(t + 2 * r), P2(XF + 8 * q + 2 * r)))
        for r in range(4): a("v_cvt_pk_bf16_f32 v%d, v%d, v%d" % (AG + 4 * q + r, t + 2 * r, t + 2 * r + 1))
        a("buffer_store_dwordx4 v[%d:%d], v5, s[20:23], s34 offen" % (AG + 4 * q, AG + 4 * q + 3))
        if q < 7: a("s_add_u32 s34, s34, 8192")
    if v.get("stamps"): a("s_waitcnt vmcnt(0)")
    stamp(a, 4, v)
    stamps_out(a, v, 5, "L_k2_st1", 49)
    a("L_k2_end:")
    a("s_endpgm")
    return kernel_desc(name, 384, 100, 256), "; @launch kernel=%s grid=(256,1,1) block=(256,1,1) lds=%d" % (name, 14 * PSLOT)
```

```python
import sys
from asmlib import *
from k0 import *
from k1a import *
from k1b import *
from k2 import *
HDR = open("recurrent_scan__sliding_block_cached__mixer_gmlp__prompt.s.ref").read().split("; Override")[0]
def build(path, v=None):
    v = v or {}
    a = Asm()
    d0, l0 = gen_k0(a, v)
    d1, l1 = gen_k1(a, v)
    d2, l2 = gen_k2(a, v)
    a("L_code_end:")
    txt = HDR + l0 + "\n" + l1 + "\n" + l2 + "\n" + '.amdgcn_target "amdgcn-amd-amdhsa--gfx950"\n.text\n' + a.text()
    txt += '.section .rodata,"a"\n.p2align 6\n' + d0 + ".p2align 6\n" + d1 + ".p2align 6\n" + d2
    open(path, "w").write(txt)
if __name__ == "__main__":
    o = dict(pf1=True, pf3=True, n1=92, r1=8, r2=8, pre=3)
    build("d0_st.s", dict(o, stamps=True))
    build("d0.s", dict(o))
    build("d1_st.s", dict(o, stamps=True, cpf=True))
    build("d1.s", dict(o, cpf=True))
    build("d2_st.s", dict(o, stamps=True, cpf=True, pf0=128))
    build("d2.s", dict(o, cpf=True, pf0=128))
```

```python
from asmlib import *
from k0 import *

REG = 4416
QST = 1056
WSLOT = 4 * REG
flat = lambda ll: [x for l in ll for x in l]

def mf16(d, A, B, c=None, acc="a"):
    D = "%s[%d:%d]" % (acc, d, d + 3)
    return "v_mfma_f32_16x16x32_bf16 %s, %s, %s, %s" % (D, A, B, D if c is None else c)
def mf32(d, A, B, c=None, acc="a"):
    D = "%s[%d:%d]" % (acc, d, d + 15)
    return "v_mfma_f32_32x32x16_bf16 %s, %s, %s, %s" % (D, A, B, D if c is None else c)

def zig(ni, nj):
    seq = []
    for i2 in range(0, ni, 2):
        js = range(nj) if (i2 // 2) % 2 == 0 else range(nj - 1, -1, -1)
        if i2 + 1 < ni:
            for n, j in enumerate(js):
                seq += [(i2, j), (i2 + 1, j)] if n % 2 == 0 else [(i2 + 1, j), (i2, j)]
        else:
            seq += [(i2, j) for j in js]
    return seq

def stamp(a, idx, v):
    if v.get("stamps"):
        a("s_memtime s[%d:%d]" % (64 + 4 * idx, 65 + 4 * idx))
        a("s_memrealtime s[%d:%d]" % (66 + 4 * idx, 67 + 4 * idx))

def stamps_out(a, v, n, lbl, area=48):
    if not v.get("stamps"): return
    a("s_cmp_lg_u32 s10, 0")
    a("s_cbranch_scc1 %s" % lbl)
    srd(a, 56, 8, 64 << 20, WS_DBG)
    a("s_waitcnt lgkmcnt(0)")
    a("s_lshl_b32 s3, s2, 7")
    a("s_add_u32 s3, s3, %d" % (area << 20))
    a("v_mov_b32 v3, 0")
    a("s_mov_b64 exec, 1")
    for i in range(n):
        for r in range(4): a("v_mov_b32 v%d, s%d" % (16 + r, 64 + 4 * i + r))
        a("buffer_store_dwordx4 v[16:19], v3, s[56:59], s3 offen offset:%d" % (16 * i))
        a("s_nop 1")
    a("s_mov_b64 exec, -1")
    a("%s:" % lbl)

def ablate(lines, v, key):
    k = v.get(key)
    if not k: return lines
    out = []
    for l in lines:
        if "nomfma" in k and l.startswith("v_mfma"): continue
        if "nods" in k and l.startswith("ds_read"): continue
        if "nobar" in k and l.startswith("s_barrier"): continue
        if "nodma" in k and l.startswith("buffer_load") and l.endswith("lds"): continue
        if "nold" in k and l.startswith("buffer_load") and not l.endswith("lds"): continue
        if "noS" in k and l.startswith("buffer_load") and "s[44:47]" in l: continue
        if "noZ" in k and l.startswith("buffer_load") and "s[24:27]" in l: continue
        if "novalu" in k and l.startswith("v_") and not l.startswith("v_mfma"): continue
        out.append(l)
    return out

def roll(a, bodies, lblbase, ctr="s37"):
    i = 0; n = 0
    while i < len(bodies):
        j = i
        while j + 1 < len(bodies) and bodies[j + 1] == bodies[i]: j += 1
        cnt = j - i + 1
        if cnt == 1:
            a.ext(bodies[i])
        else:
            l = "%s_%d" % (lblbase, n); n += 1
            a("s_mov_b32 %s, %d" % (ctr, cnt))
            a(".p2align 6")
            a("%s:" % l)
            a.ext(bodies[i])
            a("s_sub_u32 %s, %s, 1" % (ctr, ctr))
            a("s_cmp_lg_u32 %s, 0" % ctr)
            a("s_cbranch_scc1 %s" % l)
        i = j + 1

def nvm(groups):
    return sum(1 for g in groups for l in g if l.startswith("buffer_") or l.startswith("global_"))

def place_free(groups, busy, ngaps, lo=0, avoid_same=True):
    d = {}; n = len(groups)
    if n == 0: return d
    free = [g for g in range(lo, ngaps) if g not in busy]
    use = free if len(free) >= n else list(range(lo, ngaps))
    prev = -1
    for k, it in enumerate(groups):
        g = use[(k * len(use)) // n]
        d.setdefault(g, []); d[g] += it
    return d

def gemm41_setup(a, NI):
    a("v_and_b32 v8, 15, v1")
    a("v_lshlrev_b32 v8, 4, v8")
    a("v_lshrrev_b32 v3, 4, v1")
    a("v_lshl_add_u32 v8, v3, 9, v8")
    a("v_lshl_add_u32 v8, v2, 12, v8")
    a("s_mov_b32 s32, 0")
    a("s_lshl_b32 s33, s13, 19")
    a("s_mul_i32 s35, s10, %d" % REG)

def gemm41(a, v, NI, STR, accf, lbl, extra=None, lastreads=None, needs=None, R=6, NS=32):
    R = v.get("rq", R) if NI == 16 else R
    extra = extra or {}; needs = needs or {}
    FA = [16, 16 + 4 * NI]; FB = [16 + 8 * NI + 16 * k for k in range(R)]
    def dmaW(t, loop=True):
        l = [["s_add_u32 m0, s35, %d" % ((t % R) * WSLOT)] + ([] if loop else ["s_nop 0"]),
             ["buffer_load_dwordx4 v4, s[16:19], s32 offen lds"]]
        for q in range(1, 4):
            l.append(["buffer_load_dwordx4 v%d, s[16:19], s32 offen offset:%d lds" % (4 + q, QST * q)])
        l[-1].append("s_add_u32 s32, s32, 0x%x" % (32 * STR))
        return l
    def ldX(t):
        b = FB[t % R]
        l = [["buffer_load_dwordx4 v[%d:%d], v8, s[20:23], s33 offen offset:%d" % (
            b + 4 * j, b + 4 * j + 3, (j >> 1) * 2048 + (j & 1) * 256)] for j in range(4)]
        l[-1].append("s_add_u32 s33, s33, 0x4000")
        return l
    def reads(t):
        st = t & 1; slot = t % R
        va, off = (["v9", "v10", "v11"][slot // 3], (slot % 3) * WSLOT)
        return ["ds_read_b64_tr_b16 v[%d:%d], %s offset:%d" % (
            FA[st] + 4 * i + 2 * sec, FA[st] + 4 * i + 2 * sec + 1, va, off + sec * 512 + i * 32)
            for i in range(NI) for sec in range(2)]
    seq = []
    def emit_pro(tag, groups):
        a.ext(flat(groups)); seq.extend([tag] * nvm(groups))
    PRE = v.get("pre", 2)
    emit_pro("W0", dmaW(0, False))
    for t in range(PRE):
        emit_pro("X%d" % t, ldX(t)); emit_pro("W%d" % (t + 1), dmaW(t + 1, False))
    a("v_bfe_u32 v3, v1, 2, 2")
    a("v_mul_u32_u24 v9, %d, v3" % REG)
    a("v_lshrrev_b32 v3, 4, v1")
    a("v_mul_u32_u24 v3, %d, v3" % QST)
    a("v_add_u32 v9, v9, v3")
    a("v_and_b32 v3, 3, v1")
    a("v_lshl_add_u32 v9, v3, 3, v9")
    a("v_add_u32 v10, %d, v9" % (3 * WSLOT))
    if R > 6: a("v_add_u32 v11, %d, v9" % (6 * WSLOT))
    if "pro" in extra: extra["pro"](a)
    def vm(tags):
        idx = [i for i, t in enumerate(seq) if t in tags]
        return min(63, len(seq) - 1 - max(idx)) if idx else 63
    a("s_waitcnt vmcnt(%d)" % vm(["W0"]))
    a("s_barrier")
    a.ext(reads(0))
    stamp(a, 1, v)
    nxt = PRE
    NG = 4 * NI
    bodies = []; cur = []
    for s in range(NS):
        cur += ["s_waitcnt vmcnt(%d) lgkmcnt(0)" % vm(["X%d" % s, "W%d" % (s + 1)] + needs.get(s, [])), "s_barrier"]
        rd = reads(s + 1) if s + 1 < NS else (lastreads or [])
        nr = len(rd)
        rgaps = [(k * 3) // 2 for k in range(nr)]
        f = spread(rd, rgaps) if rd else {}
        groups = []
        cnt = 0
        while nxt <= s + R - 1 and cnt < 2:
            if nxt < NS: g = ldX(nxt); groups += g; seq.extend(["X%d" % nxt] * 4)
            if nxt + 1 < NS: g = dmaW(nxt + 1); groups += g; seq.extend(["W%d" % (nxt + 1)] * 4)
            nxt += 1; cnt += 1
        for tag, g in extra.get(s, []):
            groups += g; seq.extend([tag] * nvm(g))
        f = merge(f, place_free(groups, set(rgaps), NG - 2, 2))
        mf = [mf16(accf(i, j), vr(FA[s & 1] + 4 * i, 4), vr(FB[s % R] + 4 * j, 4), "0" if s == 0 else None) for i, j in zig(NI, 4)]
        cur += interleave(mf, f)
        if (s + 1) % R == 0 and s + 1 <= NS - R or s == NS - 1:
            bodies.append(cur); cur = []
    if v.get("zst"):
        st = lambda i: ["s_memtime s[%d:%d]" % (64 + 4 * i, 65 + 4 * i), "s_memrealtime s[%d:%d]" % (66 + 4 * i, 67 + 4 * i)]
        for k, b in enumerate(bodies):
            a.ext(b); a.ext(st(2 + k))
        a.ext(st(7))
        stamps_out(a, v, 8, lbl + "_zst")
        a("s_endpgm")
        return seq
    roll(a, [ablate(b, v, "abQ") for b in bodies], lbl)
    return seq
```

```python
from asmlib import *
import math, struct

WS_XN  = 0
WS_KV  = 4 << 20
WS_O   = 8 << 20
WS_Z1  = 24 << 20
WS_Z2  = 32 << 20
WS_H   = 40 << 20
WS_ST  = 48 << 20
WS_DBG = 64 << 20
WS_BYTES = 268435456
import os
OSTR = 262144 + int(os.environ.get("OPAD", "4352"))
HSTR = 57344 + int(os.environ.get("HPAD", "1280"))

def f2u(x): return struct.unpack("<I", struct.pack("<f", x))[0]
QK_SCALE = (128 ** -0.5) * math.log2(math.e)

def bf16_round(a, v, tmp=None):
    a("v_cvt_pk_bf16_f32 v%d, v%d, v%d" % (v, v, v))
    a("v_and_b32 v%d, 0xffff0000, v%d" % (v, v))

def k0_stamp_out(a, v):
    if not v.get("stamps"): return
    a("s_waitcnt vmcnt(0)")
    a("s_memrealtime s[34:35]")
    srd(a, 28, 6, 64 << 20, WS_DBG)
    a("s_lshl_b32 s3, s2, 4")
    a("s_add_u32 s3, s3, %d" % (50 << 20))
    a("v_mov_b32 v3, 0")
    a("s_waitcnt lgkmcnt(0)")
    for r in range(4): a("v_mov_b32 v%d, s%d" % (8 + r, 32 + r))
    a("v_cmp_eq_u32 vcc, 0, v0")
    a("s_and_saveexec_b64 s[36:37], vcc")
    a("buffer_store_dwordx4 v[8:11], v3, s[28:31], s3 offen")

def k0_prefetch(a, v):
    rows = v.get("pf0", 0)
    if not rows: return
    a("s_load_dwordx2 s[36:37], s[0:1], 24")
    a("s_load_dwordx2 s[38:39], s[0:1], 48")
    a("v_lshlrev_b32 v56, 7, v0")
    a("s_lshl_b32 s3, s2, 15")
    a("s_waitcnt lgkmcnt(0)")
    srd(a, 40, 36, rows * 8192)
    srd(a, 44, 38, rows * 7168)
    a("buffer_load_dword v57, v56, s[40:43], s3 offen")
    a("s_sub_u32 s3, %d, s3" % (255 << 15))
    a("buffer_load_dword v57, v56, s[44:47], s3 offen")

def k0_codepf(a, v):
    if not v.get("cpf"): return 0
    a("s_getpc_b64 s[48:49]")
    a("L_k0_pc:")
    a("s_add_u32 s48, s48, main_kernel-L_k0_pc")
    a("s_addc_u32 s49, s49, 0")
    a("s_bfe_u32 s50, s2, 0x20003")
    a("s_lshl_b32 s50, s50, 8")
    a("v_add_u32 v56, s50, v0")
    a("v_lshlrev_b32 v56, 7, v56")
    a("v_min_u32 v56, L_code_end-main_kernel-4, v56")
    a("global_load_dword v57, v56, s[48:49]")
    return 1

def k0_tlb(a, v):
    if not v.get("tlb"): return 0
    a("v_readfirstlane_b32 s50, v2")
    a("s_load_dwordx4 s[36:39], s[0:1], 24")
    a("s_load_dwordx4 s[40:43], s[0:1], 48")
    a("s_lshr_b32 s3, s2, 3")
    a("s_lshl_b32 s3, s3, 18")
    a("v_lshlrev_b32 v56, 12, v1")
    a("s_waitcnt lgkmcnt(0)")
    a("s_cmp_ge_u32 s50, 2")
    a("s_cselect_b32 s36, s40, s36"); a("s_cselect_b32 s37, s41, s37")
    a("s_cselect_b32 s38, s42, s38"); a("s_cselect_b32 s39, s43, s39")
    a("s_bitcmp1_b32 s50, 0")
    a("s_cselect_b32 s44, s38, s36"); a("s_cselect_b32 s45, s39, s37")
    a("s_cmp_eq_u32 s50, 2")
    a("s_mov_b32 s46, 0x800000")
    a("s_cselect_b32 s46, 0x700000, s46")
    a("s_mov_b32 s47, 0x00020000")
    a("buffer_load_dword v57, v56, s[44:47], s3 offen")
    return 1

def gen_k0(a, v, name="prep_kernel"):
    kernel_head(a, name)
    a("s_cmp_ge_u32 s2, 320")
    a("s_cbranch_scc1 L_k0_end")
    if v.get("stamps"): a("s_memrealtime s[32:33]")
    a("s_load_dwordx2 s[4:5], s[0:1], 0")
    a("s_load_dwordx4 s[8:11], s[0:1], 8")
    a("s_load_dwordx2 s[6:7], s[0:1], 96")
    a("v_and_b32 v1, 63, v0")
    a("v_lshrrev_b32 v2, 6, v0")
    a("s_waitcnt lgkmcnt(0)")
    a("s_cmp_ge_u32 s2, 256")
    a("s_cbranch_scc1 L_k0_kv")
    srd(a, 12, 4, 2048 * 1024 * 2)
    srd(a, 16, 6, 4 << 20, WS_XN)
    srd(a, 24, 6, 256 << 10, WS_ST)
    a("v_lshlrev_b32 v3, 2, v0")
    a("v_mov_b32 v4, -1")
    a("s_lshl_b32 s3, s2, 10")
    a("buffer_store_dword v4, v3, s[24:27], s3 offen")
    a("v_and_b32 v3, 7, v1")
    a("v_lshrrev_b32 v4, 3, v1")
    a("v_lshlrev_b32 v5, 11, v3")
    a("v_lshl_add_u32 v5, v4, 4, v5")
    a("v_lshl_add_u32 v5, v2, 9, v5")
    a("s_lshl_b32 s3, s2, 14")
    for i in range(4):
        a("buffer_load_dwordx4 v[%d:%d], v5, s[12:15], s3 offen offset:%d" % (8 + 4 * i, 11 + 4 * i, 128 * i))
    k0_prefetch(a, v)
    npf = (2 if v.get("pf0") else 0) + k0_codepf(a, v) + k0_tlb(a, v)
    a("v_lshrrev_b32 v6, 2, v4")
    a("v_lshl_add_u32 v6, v2, 3, v6")
    a("v_lshlrev_b32 v6, 14, v6")
    a("v_and_b32 v7, 3, v4")
    a("v_lshl_add_u32 v6, v7, 9, v6")
    a("v_lshl_add_u32 v6, v3, 4, v6")
    a("s_lshr_b32 s20, s2, 5")
    a("s_lshl_b32 s20, s20, 19")
    a("s_bfe_u32 s21, s2, 0x30002")
    a("s_lshl_b32 s21, s21, 11")
    a("s_add_u32 s20, s20, s21")
    a("s_and_b32 s21, s2, 3")
    a("s_lshl_b32 s21, s21, 7")
    a("s_add_u32 s20, s20, s21")
    a("s_add_u32 s21, s20, 0x8000")
    a("s_add_u32 s22, s20, 0x10000")
    a("s_add_u32 s23, s20, 0x18000")
    a("v_lshlrev_b32 v62, 3, v3")
    a("v_lshl_add_u32 v63, v2, 6, v62")
    a("v_mov_b32 v60, 0")
    a("v_mov_b32 v61, 0")
    for i in range(4):
        a("s_waitcnt vmcnt(%d)" % (3 - i + npf))
        for r in range(4):
            src = 8 + 4 * i + r; d = 24 + 8 * i + 2 * r
            a("v_lshlrev_b32 v%d, 16, v%d" % (d, src))
            a("v_and_b32 v%d, 0xffff0000, v%d" % (d + 1, src))
            a("v_add_f32 v60, v60, v%d" % d)
            a("v_fmac_f32 v61, v%d, v%d" % (d, d))
            a("v_add_f32 v60, v60, v%d" % (d + 1))
            a("v_fmac_f32 v61, v%d, v%d" % (d + 1, d + 1))
    a("s_nop 1")
    a("v_add_f32_dpp v60, v60, v60 row_ror:8 row_mask:0xf bank_mask:0xf")
    a("v_add_f32_dpp v61, v61, v61 row_ror:8 row_mask:0xf bank_mask:0xf")
    for sw in ("v_permlane16_swap_b32", "v_permlane32_swap_b32"):
        a("v_mov_b32 v58, v60")
        a("v_mov_b32 v59, v61")
        a("s_nop 1")
        a("%s v60, v58" % sw)
        a("%s v61, v59" % sw)
        a("s_nop 1")
        a("v_add_f32 v60, v60, v58")
        a("v_add_f32 v61, v61, v59")
    a("ds_write_b64 v63, v[60:61]")
    a("s_waitcnt lgkmcnt(0)")
    a("s_barrier")
    for w in range(4):
        a("ds_read_b64 v[%d:%d], v62 offset:%d" % (8 + 2 * w, 9 + 2 * w, 64 * w))
    a("s_waitcnt lgkmcnt(0)")
    a("v_add_f32 v8, v8, v10"); a("v_add_f32 v9, v9, v11")
    a("v_add_f32 v12, v12, v14"); a("v_add_f32 v13, v13, v15")
    a("v_add_f32 v8, v8, v12"); a("v_add_f32 v9, v9, v13")
    a("v_mul_f32 v8, 0x%x, v8" % f2u(1 / 1024))
    a("v_mul_f32 v9, 0x%x, v9" % f2u(1 / 1024))
    a("v_fma_f32 v9, -v8, v8, v9")
    a("v_max_f32 v9, 0, v9")
    bf16_round(a, 8); bf16_round(a, 9)
    a("v_add_f32 v9, 0x%x, v9" % f2u(1e-5))
    bf16_round(a, 9)
    a("v_sqrt_f32 v9, v9")
    a("s_nop 0")
    bf16_round(a, 9)
    a("v_rcp_f32 v9, v9")
    a("s_nop 0")
    for i in range(4):
        for r in range(4):
            d = 24 + 8 * i + 2 * r
            a("v_sub_f32 v%d, v%d, v8" % (d, d))
            a("v_sub_f32 v%d, v%d, v8" % (d + 1, d + 1))
            a("v_cvt_pk_bf16_f32 v%d, v%d, v%d" % (d + 1, d, d + 1))
            a("v_lshlrev_b32 v%d, 16, v%d" % (d, d + 1))
            a("v_and_b32 v%d, 0xffff0000, v%d" % (d + 1, d + 1))
            a("v_mul_f32 v%d, v%d, v9" % (d, d))
            a("v_mul_f32 v%d, v%d, v9" % (d + 1, d + 1))
            a("v_cvt_pk_bf16_f32 v%d, v%d, v%d" % (12 + 4 * (i & 1) + r, d, d + 1))
        o = 12 + 4 * (i & 1)
        a("buffer_store_dwordx4 v[%d:%d], v6, s[16:19], s%d offen" % (o, o + 3, 20 + i))
        a("s_nop 1")
    k0_stamp_out(a, v)
    a("s_endpgm")
    a("L_k0_kv:")
    srd(a, 12, 8, 4 * 2048 * 128 * 2)
    srd(a, 16, 10, 4 * 2048 * 128 * 2)
    srd(a, 24, 6, 1 << 20, WS_KV)
    a("s_sub_u32 s3, s2, 256")
    srd(a, 28, 6, 4096, WS_ST + (256 << 10))
    a("v_lshlrev_b32 v3, 2, v0")
    a("v_mov_b32 v4, 0")
    a("s_lshl_b32 s20, s3, 10")
    a("buffer_store_dword v4, v3, s[28:31], s20 offen")
    a("s_lshr_b32 s20, s3, 4")
    a("s_and_b32 s21, s3, 15")
    a("s_lshl_b32 s20, s20, 19")
    a("s_lshl_b32 s21, s21, 13")
    a("s_add_u32 s20, s20, s21")
    a("s_add_u32 s20, s20, %d" % (1536 * 256))
    a("s_lshl_b32 s21, s3, 14")
    a("v_and_b32 v3, 31, v1")
    a("v_lshrrev_b32 v4, 5, v1")
    a("v_lshlrev_b32 v5, 8, v3")
    a("v_lshl_add_u32 v5, v4, 4, v5")
    a("v_lshl_add_u32 v5, v2, 6, v5")
    a("buffer_load_dwordx4 v[8:11], v5, s[12:15], s20 offen")
    a("buffer_load_dwordx4 v[12:15], v5, s[12:15], s20 offen offset:32")
    a("v_lshrrev_b32 v6, 2, v3")
    a("v_and_b32 v7, 1, v6")
    a("v_bfe_u32 v16, v6, 1, 1")
    a("v_lshlrev_b32 v7, 3, v7")
    a("v_lshl_add_u32 v7, v16, 2, v7")
    a("v_and_b32 v16, 0x13, v3")
    a("v_add_u32 v7, v7, v16")
    a("v_lshl_add_u32 v7, v2, 5, v7")
    a("v_lshlrev_b32 v7, 1, v7")
    a("v_lshl_add_u32 v7, v4, 10, v7")
    a("v_add_u32 v17, 0x1000, v7")
    for sp in range(2):
        for i in range(8):
            a("buffer_load_ushort v%d, v%d, s[16:19], s20 offen offset:%d" %
              (24 + 8 * sp + i, 7 if sp == 0 else 17, ((i >> 2) * 8 + (i & 3)) * 256))
    a("v_lshlrev_b32 v18, 4, v1")
    a("v_lshl_add_u32 v18, v2, 11, v18")
    a("s_mov_b32 s22, 0x%x" % f2u(QK_SCALE))
    a("s_waitcnt vmcnt(16)")
    for r in range(8):
        a("v_lshlrev_b32 v20, 16, v%d" % (8 + r))
        a("v_and_b32 v21, 0xffff0000, v%d" % (8 + r))
        a("v_mul_f32 v20, s22, v20")
        a("v_mul_f32 v21, s22, v21")
        a("v_cvt_pk_bf16_f32 v%d, v20, v21" % (8 + r))
    a("buffer_store_dwordx4 v[8:11], v18, s[24:27], s21 offen")
    a("buffer_store_dwordx4 v[12:15], v18, s[24:27], s21 offen offset:1024")
    a("s_waitcnt vmcnt(2)")
    for sp in range(2):
        for r in range(4):
            a("v_lshl_or_b32 v%d, v%d, 16, v%d" % (40 + 4 * sp + r, 24 + 8 * sp + 2 * r + 1, 24 + 8 * sp + 2 * r))
    a("s_add_u32 s21, s21, 0x2000")
    a("buffer_store_dwordx4 v[40:43], v18, s[24:27], s21 offen")
    a("buffer_store_dwordx4 v[44:47], v18, s[24:27], s21 offen offset:1024")
    k0_stamp_out(a, v)
    a("L_k0_end:")
    a("s_endpgm")
    return kernel_desc(name, 64, 56, 64), "; @launch kernel=%s grid=(320,1,1) block=(256,1,1) lds=256" % name
```

```python
from asmlib import *
from k0 import *

from gemm41 import *

def pf_ops(v, srdreg, share, widx, voff, dst, stmp):
    st = v.get("pfs", 128); span = 64 * st
    l = [["s_mul_i32 %s, %s, %d" % (stmp, widx, share)]]
    n = -(-share // span)
    for i in range(n):
        op = "buffer_load_dwordx4 v[%d:%d]" % (dst, dst + 3) if st == 16 else "buffer_load_dword v%d" % dst
        l.append(["%s, v%d, s[%d:%d], %s offen" % (op, voff, srdreg, srdreg + 3, stmp)] + (["s_add_u32 %s, %s, %d" % (stmp, stmp, span)] if i + 1 < n else []))
    return l, n

def gen_a_path(a, v):
    srd(a, 16, 4, 1024 * 4096 * 2)
    srd(a, 20, 8, 4 << 20, WS_XN)
    STR = 8192
    a("v_lshrrev_b32 v3, 5, v1")
    a("v_lshl_add_u32 v3, v3, 2, v2")
    a("v_lshlrev_b32 v4, 13, v3")
    a("v_and_b32 v3, 31, v1")
    a("v_lshl_add_u32 v4, v3, 4, v4")
    a("s_lshl_b32 s15, s14, 9")
    a("v_add_u32 v4, s15, v4")
    for q in range(1, 4):
        a("v_add_u32 v%d, 0x%x, v%d" % (4 + q, 8 * STR - QST, 3 + q))
    gemm41_setup(a, 16)
    KVB = 32768
    def pro(a):
        a("s_load_dwordx2 s[40:41], s[0:1], 56")
        a("s_load_dwordx2 s[42:43], s[0:1], 32")
        a("s_load_dwordx2 s[60:61], s[0:1], 72")
        srd(a, 24, 8, 1 << 20, WS_KV)
        srd(a, 28, 8, 64 * OSTR, WS_O)
        a("v_lshlrev_b32 v11, 4, v1")
        a("v_lshl_add_u32 v12, v2, 12, v11")
        a("v_add_u32 v11, %d, v11" % (5 * 16384))
        a("s_lshl_b32 s36, s10, 12")
        a("s_add_u32 s36, s36, %d" % KVB)
        a("s_lshr_b32 s34, s14, 2")
        a("s_lshl_b32 s34, s34, 18")
        a("s_mov_b32 s38, %d" % (5 * 16384))
        a("s_and_b32 s39, s12, 15")
        a("s_lshl_b32 s39, s39, 2")
        a("s_add_u32 s39, s39, s10")
        a("s_and_b32 s62, s39, 3")
        a("s_and_b32 s63, s13, 4")
        a("s_add_u32 s62, s62, s63")
        a("s_bfe_u32 s63, s39, 0x30002")
        a("s_lshl_b32 s63, s63, 5")
        a("v_and_b32 v13, 31, v1")
        a("v_add_u32 v13, s63, v13")
        a("v_lshlrev_b32 v13, 12, v13")
        a("v_lshrrev_b32 v3, 5, v1")
        a("v_lshl_add_u32 v13, v3, 30, v13")
        a("s_lshr_b32 s63, s39, 5")
        a("s_lshl_b32 s63, s63, 7")
        a("s_lshl_b32 s15, s62, 9")
        if v.get("rotg"): a("s_add_u32 s63, s63, s15")
        a("s_lshl_b32 s62, s62, 20")
        a("v_lshlrev_b32 v14, 7, v1")
        a("v_cmp_lt_u32 vcc, 12, v1")
        a("v_mov_b32 v3, 0x40000000")
        a("s_and_b32 s39, s2, 127")
        a("s_lshl_b32 s39, s39, 2")
        a("v_cndmask_b32 v15, v14, v3, vcc")
        a("s_add_u32 s39, s39, s10")
        a("s_waitcnt lgkmcnt(0)")
        srd(a, 44, 40, 8 << 20)
        a("s_cmp_lt_u32 s39, 337")
        a("s_cselect_b32 s48, s42, s60")
        a("s_cselect_b32 s49, s43, s61")
        a("s_mov_b32 s15, 0x%x" % (1792 * 2048))
        a("s_cselect_b32 s50, 0x%x, s15" % (8 << 20))
        a("s_mov_b32 s51, 0x00020000")
        a("s_cselect_b32 s15, 0, 337")
        a("s_sub_u32 s39, s39, s15")
        a("s_mul_i32 s39, s39, %d" % (15 * 1664))
    kvdma = [["s_add_u32 m0, s36, s38"]] + [["buffer_load_dwordx4 v12, s[24:27], s34 offen offset:%d lds" % (1024 * q)] for q in range(4)] + \
            [["s_add_u32 s34, s34, 0x4000", "s_add_u32 s38, s38, 0x4000", "s_and_b32 s38, s38, 0x1ffff"]]
    pfS = [["s_and_b32 s15, s63, 0xfff", "s_or_b32 s15, s15, s62"],
           ["buffer_load_dword v3, v13, s[44:47], s15 offen", "s_add_u32 s63, s63, 256"]] if v.get("pf3") else []
    KR, VR_, S0, P0, QB, LS = 16, 48, [80, 96], [112, 120], 128, 4
    kreads = lambda: ["ds_read_b128 v[%d:%d], v11 offset:%d" % (KR + 4 * ks, KR + 4 * ks + 3, KVB + ks * 1024) for ks in range(8)]
    vreads = lambda: ["ds_read_b128 v[%d:%d], v11 offset:%d" % (VR_ + 4 * (dt * 2 + sp), VR_ + 4 * (dt * 2 + sp) + 3,
                      KVB + 8192 + (dt * 2 + sp) * 1024) for sp in range(2) for dt in range(4)]
    qacc = lambda i, j: ((i >> 3) * 2 + (j >> 1)) * 64 + ((i & 7) * 2 + (j & 1)) * 4
    pfA = []
    if v.get("pfa"):
        pfA = [["s_and_b32 s58, s2, 127", "s_lshl_b32 s58, s58, 2", "s_add_u32 s58, s58, s10", "s_mul_i32 s59, s58, 14336",
                "s_mov_b32 s96, s6", "s_mov_b32 s97, s7", "s_mov_b32 s98, 0x700000", "s_mov_b32 s99, 0x00020000"],
               ["buffer_load_dword v3, v14, s[96:99], s59 offen", "s_add_u32 s59, s59, 8192"],
               ["buffer_load_dword v3, v14, s[96:99], s59 offen"]]
        if v.get("pfa") == 2:
            pfA += [["s_lshl_b32 s59, s58, 14"], ["buffer_load_dword v3, v14, s[16:19], s59 offen", "s_add_u32 s59, s59, 8192"],
                    ["buffer_load_dword v3, v14, s[16:19], s59 offen"]]
    extra = {"pro": pro, v.get("pfat", 0): [("P", pfA)], 27: [("KV0", kvdma)], 28: [("KV1", kvdma)], 29: [("KV2", kvdma), ("P", pfS)], 30: [("P", pfS + pfS)],
             31: [("KV3", kvdma), ("KV4", kvdma), ("KV5", kvdma), ("KV6", kvdma)]}
    seq = gemm41(a, v, 16, STR, qacc, "L_a_q", extra, kreads() + vreads(), {31: ["KV0"]})
    stamp(a, 2, v)
    qf = lambda jp, i: QB + (jp * 8 + i) * 4
    for r in range(4): a("v_mov_b32 v%d, 0" % (LS + r))
    a("v_add_u32 v11, 0x4000, v11")
    a("s_nop 7")
    pend = []
    n = 0
    for jp in range(4):
        for i in range(8):
            t = 80 + 8 * (n & 1); F = qf(jp, i); n += 1
            for r in range(8): a("v_accvgpr_read_b32 v%d, a%d" % (t + r, jp * 64 + i * 8 + r))
            a.ext(pend)
            for r in range(4): a("v_cvt_pk_bf16_f32 v%d, v%d, v%d" % (F + r, t + 2 * r, t + 2 * r + 1))
            pend = ["v_permlane16_swap_b32 v%d, v%d" % (F, F + 2), "v_permlane16_swap_b32 v%d, v%d" % (F + 1, F + 3)]
    a("s_nop 1")
    a.ext(pend)
    a("s_waitcnt lgkmcnt(0)")
    a("s_nop 1")
    stamp(a, 3, v)
    def QK(qg):
        return [mf32(S0[qg & 1], vr(KR + 4 * ks, 4), vr(qf(qg, ks), 4), "0" if ks == 0 else None, "v") for ks in range(8)]
    def PV(qg, first=False):
        return [mf32(qg * 64 + dt * 16, vr(VR_ + 4 * (dt * 2 + sp), 4), vr(P0[qg & 1] + 4 * sp, 4),
                     "0" if (first and sp == 0) else None) for sp in range(2) for dt in range(4)]
    def softmax_ops(qg):
        S = S0[qg & 1]; P = P0[qg & 1]; ops = []
        for k in range(0, 16, 2):
            ops += [("v_exp_f32 v%d, v%d" % (S + k, S + k), 8), ("v_exp_f32 v%d, v%d" % (S + k + 1, S + k + 1), 8),
                    ("v_add_f32 v%d, v%d, v%d" % (LS + qg, LS + qg, S + k), 4),
                    ("v_add_f32 v%d, v%d, v%d" % (LS + qg, LS + qg, S + k + 1), 4),
                    ("v_cvt_pk_bf16_f32 v%d, v%d, v%d" % (P + k // 2, S + k, S + k + 1), 4)]
        return ops
    CAP = v.get("cap", 20)
    def place(ops, gaps):
        d = {}; gi = 0; used = 0
        for s, c in ops:
            if used + c > CAP and gi + 1 < len(gaps):
                gi += 1; used = 0
            d.setdefault(gaps[gi], []).append(s); used += c
        return d
    def slab_body(first=False, last=False):
        blocks = [QK(1), PV(0, first), QK(2), PV(1, first), QK(3), PV(2, first), [] if last else QK(0), PV(3, first)]
        fill = [dict() for _ in range(8)]
        def add(d):
            for (b, g), l in d.items(): fill[b].setdefault(g, []); fill[b][g] += l
        so = softmax_ops(0)
        g_pv = lambda b: [(b, g) for g in range(2, 8)]
        g_qk = lambda b: [(b, g) for g in range(0, 7)]
        d0 = place(so, g_pv(7) + g_qk(0))
        add({k: l for k, l in d0.items() if k[0] == 0})
        add(place(softmax_ops(1), g_pv(1) + g_qk(2)))
        add(place(softmax_ops(2), g_pv(3) + g_qk(4)))
        if not last:
            add(place(softmax_ops(3), g_pv(5) + g_qk(6)))
            add({k: l for k, l in d0.items() if k[0] == 7})
            for g, s in enumerate(kreads()): fill[4].setdefault(g, []).insert(0, s)
            for g, s in enumerate(vreads()): fill[7].setdefault(g, []).insert(0, s)
            fill[5].setdefault(7, []).append("s_waitcnt lgkmcnt(0)")
            pfW = [["buffer_load_dword v3, v15, s[48:51], s39 offen", "s_add_u32 s39, s39, 1664"]] if v.get("pf1") else []
            dm = kvdma + pfS + pfW
            spots = [(1, 0), (1, 1), (3, 0), (3, 1), (5, 0), (5, 1)] + [(7, 0), (7, 1)][:len(pfS)] + [(0, 7)][:len(pfW)]
            for (b, g), l in zip(spots, dm):
                fill[b].setdefault(g, []); fill[b][g] += l
        else:
            fill[5].setdefault(7, [])
            fill[5][7] += ["s_nop 7"] + [s for s, c in softmax_ops(3)] + ["s_nop 1"]
        if not first:
            fill[0].setdefault(7, []).append("s_waitcnt lgkmcnt(0)")
            if not last:
                fill[1].setdefault(0, []).insert(0, "v_add_u32 v11, 0x4000, v11")
                fill[1].setdefault(1, []).insert(0, "v_and_b32 v11, 0x1ffff, v11")
        sq = list(seq); cnts = []
        for i in range(15):
            cnts.append(len(sq) - 1 - max(k for k, t in enumerate(sq) if t == "KV%d" % (i + 1)))
            sq += ["P"] * bool(v.get("pf1")) + ["KV%d" % (i + 7)] * 4 + ["P"] * bool(v.get("pf3"))
        out = [] if last else ["s_waitcnt vmcnt(%d)" % (cnts[0] if first else min(cnts[1:])), "s_barrier"]
        for b in range(8): out += interleave(blocks[b], fill[b])
        return out, [l for k, l in sorted(d0.items()) if k[0] == 7]
    body0, pre = slab_body(first=True)
    a.ext(QK(0))
    a("s_nop 15")
    a.ext(flat(pre))
    a.ext(body0)
    a("s_mov_b32 s37, 14")
    a(".p2align 6")
    a("L_a_aloop:")
    a.ext(slab_body()[0])
    a("s_sub_u32 s37, s37, 1")
    a("s_cmp_lg_u32 s37, 0")
    a("s_cbranch_scc1 L_a_aloop")
    a.ext(slab_body(last=True)[0])
    stamp(a, 4, v)
    for q in range(4): a("v_mov_b32 v%d, v%d" % (16 + q, LS + q))
    a("s_nop 1")
    for q in range(4): a("v_permlane32_swap_b32 v%d, v%d" % (LS + q, 16 + q))
    a("s_nop 1")
    for q in range(4): a("v_add_f32 v%d, v%d, v%d" % (LS + q, LS + q, 16 + q))
    if not v.get("nofallback"):
        a("v_min3_f32 v16, v4, v5, v6")
        a("v_max3_f32 v17, v4, v5, v6")
        a("v_min_f32 v16, v16, v7")
        a("v_max_f32 v17, v17, v7")
        a("v_add_f32 v18, v4, v5")
        a("v_add_f32 v19, v6, v7")
        a("v_add_f32 v18, v18, v19")
        a("v_cmp_gt_f32 vcc, 0x%x, v16" % f2u(2.0 ** (v.get("lo", -64))))
        a("s_mov_b64 s[40:41], vcc")
        a("v_cmp_lt_f32 vcc, 0x%x, v17" % f2u(2.0 ** (v.get("hi", 64))))
        a("s_or_b64 s[40:41], s[40:41], vcc")
        a("v_cmp_u_f32 vcc, v18, v18")
        a("s_or_b64 s[40:41], s[40:41], vcc")
        a("s_cmp_lg_u64 s[40:41], 0")
        a("s_cbranch_scc1 L_a_fallback")
    a("L_a_final:")
    for q in range(4): a("v_rcp_f32 v%d, v%d" % (16 + 2 * q, LS + q))
    a("s_lshl_b32 s40, s10, 1")
    a("s_lshl_b32 s41, s13, 3")
    a("s_add_u32 s40, s40, s41")
    a("s_mul_i32 s40, s40, %d" % OSTR)
    a("s_lshl_b32 s41, s14, 14")
    a("s_add_u32 s40, s40, s41")
    a("s_waitcnt vmcnt(0)")
    a("v_lshlrev_b32 v3, 4, v1")
    n = 0
    for qg in range(4):
        for f in range(8):
            t = 32 + 16 * (n % 3); n += 1
            for r in range(8): a("v_accvgpr_read_b32 v%d, a%d" % (t + r, qg * 64 + f * 8 + r))
            for r in range(4):
                a("v_pk_mul_f32 v[%d:%d], v[%d:%d], v[%d:%d] op_sel_hi:[1,0]" % (t + 2 * r, t + 2 * r + 1, t + 2 * r, t + 2 * r + 1, 16 + 2 * qg, 17 + 2 * qg))
            for r in range(4): a("v_cvt_pk_bf16_f32 v%d, v%d, v%d" % (t + 8 + r, t + 2 * r, t + 2 * r + 1))
            a("buffer_store_dwordx4 v[%d:%d], v3, s[28:31], s40 offen offset:%d" % (t + 8, t + 11, 1024 * (f & 3)))
            if f == 3: a("s_add_u32 s40, s40, 4096")
            if f == 7 and qg < 3:
                d = OSTR - 4096 if qg != 1 else 8192 - OSTR - 4096
                a("s_add_u32 s40, s40, %d" % d if d > 0 else "s_sub_u32 s40, s40, %d" % -d)
    if v.get("stamps"): a("s_waitcnt vmcnt(0)")
    stamp(a, 5, v)
    stamps_out(a, v, 6, "L_a_st")
    a("s_endpgm")
    if v.get("nofallback"): return
    a("L_a_fallback:")
    a("v_lshlrev_b32 v3, 4, v1")
    a("s_lshr_b32 s34, s14, 2")
    a("s_lshl_b32 s34, s34, 18")
    MX = 112
    for q in range(4): a("v_mov_b32 v%d, 0xff800000" % (MX + q))
    a("s_waitcnt vmcnt(0)")
    a("s_mov_b32 s37, 0")
    def kload(so):
        for ks in range(8):
            if ks == 4: a("s_add_u32 s39, %s, 4096" % so)
            a("buffer_load_dwordx4 v[%d:%d], v3, s[24:27], %s offen offset:%d" % (KR + 4 * ks, KR + 4 * ks + 3, so if ks < 4 else "s39", 1024 * (ks & 3)))
    a("L_a_fb1:")
    a("s_add_u32 s38, s34, s37")
    kload("s38")
    a("s_waitcnt vmcnt(0)")
    for qg in range(4):
        a.ext(QK(qg))
        a("s_nop 15")
        S = S0[qg & 1]
        for k in range(0, 16, 2): a("v_max3_f32 v%d, v%d, v%d, v%d" % (MX + qg, MX + qg, S + k, S + k + 1))
        a("s_nop 1")
    a("s_add_u32 s37, s37, 0x4000")
    a("s_cmp_lg_u32 s37, 0x40000")
    a("s_cbranch_scc1 L_a_fb1")
    for q in range(4): a("v_mov_b32 v%d, v%d" % (MX + 4 + q, MX + q))
    a("s_nop 1")
    for q in range(4): a("v_permlane32_swap_b32 v%d, v%d" % (MX + q, MX + 4 + q))
    a("s_nop 1")
    for q in range(4): a("v_max_f32 v%d, v%d, v%d" % (12 + q, MX + q, MX + 4 + q))
    for q in range(4): a("v_mov_b32 v%d, 0" % (LS + q))
    for r in range(256): a("v_accvgpr_write_b32 a%d, 0" % r)
    a("s_mov_b32 s37, 0")
    a("L_a_fb2:")
    a("s_add_u32 s38, s34, s37")
    kload("s38")
    for f in range(8):
        if f % 4 == 0: a("s_add_u32 s39, s38, %d" % (8192 + 1024 * f))
        a("buffer_load_dwordx4 v[%d:%d], v3, s[24:27], s39 offen offset:%d" % (VR_ + 4 * f, VR_ + 4 * f + 3, 1024 * (f & 3)))
    a("s_waitcnt vmcnt(0)")
    for qg in range(4):
        a.ext(QK(qg))
        a("s_nop 15")
        S = S0[qg & 1]
        for k in range(16): a("v_sub_f32 v%d, v%d, v%d" % (S + k, S + k, 12 + qg))
        a.ext([s for s, c in softmax_ops(qg)])
        a("s_nop 1")
        a.ext(PV(qg))
    a("s_add_u32 s37, s37, 0x4000")
    a("s_cmp_lg_u32 s37, 0x40000")
    a("s_cbranch_scc1 L_a_fb2")
    for q in range(4): a("v_mov_b32 v%d, v%d" % (16 + q, LS + q))
    a("s_nop 1")
    for q in range(4): a("v_permlane32_swap_b32 v%d, v%d" % (LS + q, 16 + q))
    a("s_nop 1")
    for q in range(4): a("v_add_f32 v%d, v%d, v%d" % (LS + q, LS + q, 16 + q))
    a("s_nop 7")
    a("s_branch L_a_final")
```

```python
from asmlib import *
from k0 import *
from k1a import *
import math

ST_STATS = WS_ST
ST_FLAGS = WS_ST + (256 << 10)
ZSTAGE = 28672
GELU_C1 = -2.0 * math.sqrt(2.0 / math.pi) * math.log2(math.e)
GELU_C2 = GELU_C1 * 0.044715
POLL_MAX = 1 << 16

def gelu_tile(x, t, acc, stats=None):
    P = lambda r: "v[%d:%d]" % (r, r + 1)
    o = ["v_accvgpr_read_b32 v%d, a%d" % (x + r, acc + r) for r in range(4)]
    for h in (0, 2): o.append("v_pk_mul_f32 %s, %s, %s" % (P(t + h), P(x + h), P(x + h)))
    for h in (0, 2): o.append("v_pk_fma_f32 %s, %s, s[60:61], s[60:61] op_sel:[0,0,1] op_sel_hi:[1,0,1]" % (P(t + h), P(t + h)))
    for h in (0, 2): o.append("v_pk_mul_f32 %s, %s, %s" % (P(t + h), P(t + h), P(x + h)))
    for r in range(4): o.append("v_exp_f32 v%d, v%d" % (t + r, t + r))
    for h in (0, 2): o.append("v_pk_add_f32 %s, %s, 1.0 op_sel_hi:[1,0]" % (P(t + h), P(t + h)))
    for r in range(4): o.append("v_rcp_f32 v%d, v%d" % (t + r, t + r))
    for h in (0, 2): o.append("v_pk_mul_f32 %s, %s, %s" % (P(x + h), P(x + h), P(t + h)))
    if stats is not None:
        for h in (0, 2):
            o.append("v_pk_add_f32 %s, %s, %s" % (P(stats), P(stats), P(x + h)))
            o.append("v_pk_fma_f32 %s, %s, %s, %s" % (P(stats + 2), P(x + h), P(x + h), P(stats + 2)))
    return o

def gen_b_path(a, v):
    a("s_load_dwordx4 s[40:43], s[0:1], 56")
    srd(a, 16, 6, 1024 * 3584 * 2)
    srd(a, 20, 8, 4 << 20, WS_XN)
    STR = 7168
    a("v_lshrrev_b32 v3, 5, v1")
    a("v_lshl_add_u32 v3, v3, 2, v2")
    a("v_mul_u32_u24 v4, %d, v3" % STR)
    a("v_and_b32 v3, 31, v1")
    a("v_lshl_add_u32 v4, v3, 4, v4")
    a("s_mul_i32 s15, s14, 224")
    a("v_add_u32 v4, s15, v4")
    a("v_add_u32 v5, %d, v4" % (3584 - 224))
    a("v_cmp_lt_u32 vcc, 13, v3")
    a("s_nop 1")
    a("v_cndmask_b32 v4, v4, v5, vcc")
    a("v_mov_b32 v5, 0x40000000")
    a("v_cmp_lt_u32 vcc, 27, v3")
    a("s_nop 1")
    a("v_cndmask_b32 v4, v4, v5, vcc")
    for q in range(1, 4):
        a("v_add_u32 v%d, 0x%x, v%d" % (4 + q, 8 * STR - QST, 3 + q))
    gemm41_setup(a, 14)
    def pro(a):
        a("s_waitcnt lgkmcnt(0)")
        srd(a, 44, 40, 2048 * 2048 * 2)
        srd(a, 52, 42, 4096)
        srd(a, 24, 8, 7 << 20, WS_Z2)
        srd(a, 28, 8, 128 * HSTR, WS_H)
        srd(a, 48, 8, (256 << 10) + 2048, ST_STATS)
        a("s_mov_b32 s60, 0x%x" % f2u(GELU_C2))
        a("s_mov_b32 s61, 0x%x" % f2u(GELU_C1))
        a.ext(pre)
    zacc = lambda i, j: (i * 4 + j) * 4
    SBASE = 65536
    def dmaS(loop=False):
        l = []
        for hf in range(2):
            l.append(["s_add_u32 m0, s39, %d" % (4096 * hf)] + ([] if loop else ["s_nop 0"]))
            l += [["buffer_load_dwordx4 v%d, s[44:47], s%d offen offset:%d lds" % (12 + q, 62 + hf, 1024 * q)] for q in range(4)]
        l.append(["s_add_u32 s62, s62, 128", "s_add_u32 s63, s63, 128"])
        l.append(["s_add_u32 s39, s39, 32768", "s_cmp_ge_u32 s39, %d" % (SBASE + 3 * 32768)])
        l.append(["s_cselect_b32 s15, %d, 0" % (3 * 32768), "s_sub_u32 s39, s39, s15"])
        return l
    pre = ["v_lshrrev_b32 v3, 3, v1",
           "v_lshl_add_u32 v12, v2, 6, v3",
           "v_lshlrev_b32 v12, 12, v12",
           "v_bfe_u32 v3, v1, 4, 1",
           "v_and_b32 v13, 7, v1",
           "v_xor_b32 v3, v3, v13",
           "v_xor_b32 v13, 6, v3",
           "v_lshl_add_u32 v13, v13, 4, v12",
           "v_lshl_add_u32 v12, v3, 4, v12",
           "v_add_u32 v13, %d, v13" % (8 * 4096 - 1024),
           "v_add_u32 v14, %d, v12" % (16 * 4096 - 2048),
           "v_add_u32 v15, %d, v13" % (16 * 4096 - 2048),
           "s_lshl_b32 s62, s13, 20",
           "s_add_u32 s63, s62, %d" % (32 * 4096),
           "s_lshl_b32 s39, s10, 13",
           "s_add_u32 s39, s39, %d" % SBASE]
    extra = {"pro": pro, 31: [("S0", dmaS(True)), ("S1", dmaS(True)), ("S2", dmaS(True))]}
    gemm41(a, v, 14, STR, zacc, "L_b_z", extra, R=v.get("rz", 8))
    stamp(a, 2, v)
    GZ2, GZ1 = 16, 144
    a("v_and_b32 v3, 15, v1")
    a("v_lshl_add_u32 v3, v2, 6, v3")
    a("v_lshlrev_b32 v3, 1, v3")
    a("s_lshl_b32 s15, s13, 9")
    for j in range(4): a("buffer_load_ushort v%d, v3, s[52:55], s15 offen offset:%d" % (4 + j, 32 * j))
    STA = 144
    for r in range(16): a("v_mov_b32 v%d, 0" % (STA + r))
    n = 0
    for i in range(7):
        for j in range(4):
            a.ext(gelu_tile(GZ2 + zacc(i, j), 128 + 4 * (n & 1), 112 + zacc(i, j), STA + 4 * j)); n += 1
    for j in range(4):
        a("v_add_f32 v%d, v%d, v%d" % (STA + 4 * j, STA + 4 * j, STA + 4 * j + 1))
        a("v_add_f32 v%d, v%d, v%d" % (STA + 4 * j + 2, STA + 4 * j + 2, STA + 4 * j + 3))
    a("s_nop 1")
    for o in (0, 2):
        a("v_permlane32_swap_b32 v%d, v%d" % (STA + o, STA + 8 + o))
        a("v_permlane32_swap_b32 v%d, v%d" % (STA + 4 + o, STA + 12 + o))
    a("s_nop 1")
    for o in (0, 2):
        a("v_add_f32 v%d, v%d, v%d" % (STA + o, STA + o, STA + 8 + o))
        a("v_add_f32 v%d, v%d, v%d" % (STA + 4 + o, STA + 4 + o, STA + 12 + o))
    a("s_nop 1")
    for o in (0, 2): a("v_permlane16_swap_b32 v%d, v%d" % (STA + o, STA + 4 + o))
    a("s_nop 1")
    a("v_add_f32 v%d, v%d, v%d" % (132, STA, STA + 4))
    a("v_add_f32 v%d, v%d, v%d" % (133, STA + 2, STA + 6))
    a("v_lshlrev_b32 v10, 3, v0")
    a("s_lshl_b32 s34, s13, 15")
    a("s_lshl_b32 s15, s14, 11")
    a("s_add_u32 s15, s15, s34")
    a("buffer_store_dwordx2 v[132:133], v10, s[48:51], s15 offen sc1")
    a("s_nop 1")
    for i in range(7):
        for j in range(4):
            a.ext(gelu_tile(GZ1 + zacc(i, j), 136 + 4 * (n & 1), zacc(i, j))); n += 1
    stamp(a, 3, v)
    a("s_mov_b32 s37, 0")
    a("L_b_poll1:")
    a("s_mov_b32 s15, s34")
    for f in range(16):
        a("buffer_load_dwordx2 a[%d:%d], v10, s[48:51], s15 offen offset:%d sc1" % (224 + 2 * f, 225 + 2 * f, 2048 * (f & 1)))
        if f & 1: a("s_add_u32 s15, s15, 4096")
    a("s_waitcnt vmcnt(0)")
    a("v_accvgpr_read_b32 v128, a224")
    a("v_accvgpr_read_b32 v129, a225")
    a("v_mov_b32 v130, v129")
    for f in range(1, 16):
        t = 132 + 2 * (f & 1)
        a("v_accvgpr_read_b32 v%d, a%d" % (t, 224 + 2 * f))
        a("v_accvgpr_read_b32 v%d, a%d" % (t + 1, 225 + 2 * f))
        a("v_add_f32 v128, v128, v%d" % t)
        a("v_add_f32 v129, v129, v%d" % (t + 1))
        a("v_max_u32 v130, v130, v%d" % (t + 1))
    a("v_cmp_eq_u32 vcc, -1, v130")
    a("s_add_u32 s37, s37, 1")
    a("s_cmp_ge_u32 s37, %d" % POLL_MAX)
    a("s_cbranch_scc1 L_b_poll1_done")
    a("s_cbranch_vccnz L_b_poll1")
    a("L_b_poll1_done:")
    a("v_mul_f32 v128, 0x%x, v128" % f2u(1 / 1792))
    a("v_mul_f32 v129, 0x%x, v129" % f2u(1 / 1792))
    a("v_fma_f32 v129, -v128, v128, v129")
    a("v_max_f32 v129, 0, v129")
    bf16_round(a, 128); bf16_round(a, 129)
    a("v_add_f32 v129, 0x%x, v129" % f2u(1e-5))
    bf16_round(a, 129)
    a("v_sqrt_f32 v129, v129")
    a("s_nop 0")
    bf16_round(a, 129)
    a("v_rcp_f32 v129, v129")
    a("v_and_b32 v3, 15, v1")
    a("v_mul_f32 v128, v128, v129")
    a("v_sub_f32 v128, 0, v128")
    a("v_lshlrev_b32 v3, 2, v3")
    for j in range(4):
        a("ds_bpermute_b32 v%d, v3, v129 offset:%d" % (132 + 2 * j, 64 * j))
        a("ds_bpermute_b32 v%d, v3, v128 offset:%d" % (133 + 2 * j, 64 * j))
    a("v_bfe_u32 v11, v1, 2, 2")
    a("v_lshlrev_b32 v11, 8, v11")
    a("v_lshrrev_b32 v3, 4, v1")
    a("v_lshl_add_u32 v11, v3, 6, v11")
    a("v_and_b32 v3, 3, v1")
    a("v_lshl_add_u32 v11, v3, 4, v11")
    a("s_mul_i32 s33, s14, %d" % (64 * 7168))
    a("s_lshl_b32 s15, s13, 2")
    a("s_add_u32 s15, s15, s10")
    a("s_mul_i32 s15, s15, %d" % (2 * 7168))
    a("s_add_u32 s15, s15, s33")
    a("s_waitcnt lgkmcnt(0)")
    n = 0
    for kk in range(2):
        for i in range(7):
            o = 128 if n & 1 == 0 else 140; n += 1
            for d in range(2):
                j = 2 * kk + d; x = GZ2 + zacc(i, j)
                for h in (0, 2):
                    a("v_pk_fma_f32 v[%d:%d], v[%d:%d], v[%d:%d], v[%d:%d] op_sel:[0,0,1] op_sel_hi:[1,0,1]" % (
                        x + h, x + h + 1, x + h, x + h + 1, 132 + 2 * j, 133 + 2 * j, 132 + 2 * j, 133 + 2 * j))
                for h in (0, 2):
                    a("v_cvt_pk_bf16_f32 v%d, v%d, v%d" % (o + 2 * d + h // 2, x + h, x + h + 1))
            p = kk * 7 + i
            a("buffer_store_dwordx4 v[%d:%d], v11, s[24:27], s15 offen offset:%d sc1" % (o, o + 3, 1024 * (p & 3)))
            if p & 3 == 3: a("s_add_u32 s15, s15, 4096")
    for j in range(4): a("v_lshlrev_b32 v%d, 16, v%d" % (4 + j, 4 + j))
    for i in range(7):
        for j in range(4):
            for e in range(4): a("v_accvgpr_write_b32 a%d, v%d" % (112 + zacc(i, j) + e, 4 + j))
    a("v_lshrrev_b32 v9, 5, v1")
    a("v_lshlrev_b32 v9, 9, v9")
    a("v_and_b32 v3, 3, v1")
    a("v_lshl_add_u32 v9, v3, 6, v9")
    a("v_bfe_u32 v3, v1, 2, 2")
    a("v_lshl_add_u32 v9, v3, 4, v9")
    a("v_bfe_u32 v3, v1, 4, 1")
    a("v_lshl_add_u32 v9, v3, 3, v9")
    a("s_lshl_b32 s35, s10, 12")
    a("s_cmp_eq_u32 s10, 3")
    a("s_cselect_b32 s15, 1024, 0")
    a("s_sub_u32 s15, s35, s15")
    a("v_lshlrev_b32 v8, 4, v1")
    a("v_add_u32 v8, s15, v8")
    a("s_cmp_ge_u32 s10, 2")
    a("s_cselect_b32 s15, 0x40000000, 0")
    a("v_add_u32 v5, s15, v8")
    a("v_bfe_u32 v3, v1, 4, 1")
    a("v_lshlrev_b32 v6, 1, v3")
    a("v_lshrrev_b32 v3, 5, v1")
    a("v_or_b32 v6, v6, v3")
    a("v_bfe_u32 v3, v1, 1, 1")
    a("v_xor_b32 v6, v6, v3")
    a("v_bfe_u32 v3, v1, 3, 1")
    a("v_mul_u32_u24 v3, 6, v3")
    a("v_xor_b32 v6, v6, v3")
    a("v_lshlrev_b32 v6, 4, v6")
    a("v_and_b32 v3, 15, v1")
    a("v_lshl_add_u32 v6, v3, 7, v6")
    a("v_lshl_add_u32 v6, v2, 13, v6")
    a("v_add_u32 v6, %d, v6" % SBASE)
    a("v_xor_b32 v7, 64, v6")
    a("s_lshl_b32 s15, s14, 7")
    a("s_add_u32 s36, s15, %d" % (256 << 10))
    a("s_lshl_b32 s15, s13, 4")
    a("s_lshl_b32 s38, s10, 2")
    a("s_add_u32 s15, s15, s38")
    a("s_add_u32 s15, s15, s36")
    a("v_mov_b32 v3, 0")
    a("v_mov_b32 v4, 1")
    a("s_waitcnt vmcnt(0)")
    a("s_mov_b64 exec, 1")
    a("buffer_store_dword v4, v3, s[48:51], s15 offen sc1")
    a("s_mov_b64 exec, -1")
    stamp(a, 4, v)
    a("v_and_b32 v3, 31, v1")
    a("v_lshlrev_b32 v3, 2, v3")
    a("s_mov_b32 s37, 0")
    a("L_b_poll2:")
    a("buffer_load_dword v4, v3, s[48:51], s36 offen sc1")
    a("s_waitcnt vmcnt(0)")
    a("v_cmp_ne_u32 vcc, 1, v4")
    a("s_add_u32 s37, s37, 1")
    a("s_cmp_ge_u32 s37, %d" % POLL_MAX)
    a("s_cbranch_scc1 L_b_poll2_done")
    a("s_cbranch_vccnz L_b_poll2")
    a("L_b_poll2_done:")
    a("s_barrier")
    stamp(a, 5, v)
    GA = [16, 44]; GB = [72, 88, 104, 120]
    def dmaZ(T, loop=False):
        l = [["s_add_u32 m0, s35, %d" % ((T & 3) * 16384)] + ([] if loop else ["s_nop 0"])]
        l += [["buffer_load_dwordx4 v%d, s[24:27], s33 offen offset:%d sc1 lds" % (8 if q < 3 else 5, 1024 * q)] for q in range(4)]
        l += [["s_add_u32 s33, s33, 14336"]]
        return l
    def greads(step):
        st = step & 1
        pos = lambda p: p + (1 if p >= 11 else 0)
        return ["ds_read_b64_tr_b16 v[%d:%d], v9 offset:%d" % (
            GA[st] + 4 * i + 2 * sec, GA[st] + 4 * i + 2 * sec + 1, ((step >> 1) & 3) * 16384 + pos((step & 1) * 7 + i) * 1024 + sec * 256)
            for i in range(7) for sec in range(2)]
    def breads(T):
        l = ["ds_read_b128 v[%d:%d], v%d offset:%d" % (GB[(2 * T + d) & 3] + 4 * j, GB[(2 * T + d) & 3] + 4 * j + 3, 136 + d, 2048 * j)
             for d in range(2) for j in range(4)]
        return l
    badv = ["v_add_u32 v136, s38, v6", "v_add_u32 v137, s38, v7", "s_add_u32 s38, s38, 32768",
            "s_cmp_eq_u32 s38, %d" % (3 * 32768), "s_cselect_b32 s38, 0, s38"]
    def gmf(s):
        return [mf16(112 + zacc(i, j), vr(GA[s & 1] + 4 * i, 4), vr(GB[s & 3] + 4 * j, 4)) for i, j in zig(7, 4)]
    a("s_mov_b32 s38, 0")
    for T in range(4): a.ext(flat(dmaZ(T)))
    a.ext(badv)
    a.ext(breads(0))
    a("s_waitcnt vmcnt(12)")
    a("s_barrier")
    a.ext(greads(0))
    seq = ["Z0"] * 4 + ["Z1"] * 4 + ["Z2"] * 4 + ["Z3"] * 4
    bodies = []; cur = []
    for s in range(64):
        T = (s + 1) // 2
        f = {}
        if s & 1:
            if s < 63:
                need = [t for t in ("Z%d" % T, "S%d" % T) if t in seq]
                vm = len(seq) - 1 - max(i for i, t in enumerate(seq) if t in need)
                cur += ["s_waitcnt vmcnt(%d) lgkmcnt(0)" % vm, "s_barrier"]
                g = greads(s + 1); b = breads(T)
                f = {-1: badv[:2]}
                f = merge(f, spread(g[:4] + b[:4] + g[4:] + b[4:], list(range(0, 22))))
                f = merge(f, {22: badv[2:3], 23: badv[3:]})
                if T + 3 < 32:
                    f = merge(f, spread(dmaZ(T + 3, True), [1, 3, 8, 13, 18, 24])); seq += ["Z%d" % (T + 3)] * 4
            else:
                cur += ["s_waitcnt lgkmcnt(0)"]
        else:
            cur += ["s_waitcnt lgkmcnt(0)"]
            f = spread(greads(s + 1), [0, 1, 2, 4, 6, 8, 10, 12, 14, 16, 18, 20, 21, 22])
            if T + 3 < 32:
                f = merge(f, spread(dmaS(True), [1, 3, 5, 7, 9, 11, 13, 15, 17, 19, 23, 24, 25])); seq += ["S%d" % (T + 3)] * 8
        cur += interleave(gmf(s), f)
        if s & 7 == 7: bodies.append(cur); cur = []
    roll(a, [ablate(b, v, "abG") for b in bodies], "L_b_g")
    stamp(a, 6, v)
    a("s_lshl_b32 s15, s13, 2")
    a("s_add_u32 s15, s15, s10")
    a("s_mul_i32 s15, s15, %d" % (4 * HSTR))
    a("s_lshr_b32 s38, s14, 1")
    a("s_mul_i32 s38, s38, 7168")
    a("s_add_u32 s15, s15, s38")
    a("s_and_b32 s38, s14, 1")
    a("s_mul_i32 s39, s38, 3072")
    a("s_lshl_b32 s38, s38, 9")
    a("s_add_u32 s38, s38, s15")
    a("s_add_u32 s38, s38, 6144")
    a("s_add_u32 s15, s15, s39")
    a("v_lshlrev_b32 v3, 4, v1")
    a("v_lshlrev_b32 v4, 3, v1")
    a("s_nop 4")
    n = 0
    for j in range(4):
        for u in range(4):
            t = 16 + 16 * (n % 3); n += 1
            tiles = [2 * u, 2 * u + 1] if u < 3 else [6]
            for d, i in enumerate(tiles):
                for e in range(4): a("v_accvgpr_read_b32 v%d, a%d" % (t + 4 * d + e, 112 + zacc(i, j) + e))
            for d, i in enumerate(tiles):
                for h in (0, 2):
                    x = t + 4 * d + h; z = GZ1 + zacc(i, j) + h
                    a("v_pk_mul_f32 v[%d:%d], v[%d:%d], v[%d:%d]" % (x, x + 1, x, x + 1, z, z + 1))
            for r in range(2 * len(tiles)): a("v_cvt_pk_bf16_f32 v%d, v%d, v%d" % (t + 8 + r, t + 2 * r, t + 2 * r + 1))
            if u < 3: a("buffer_store_dwordx4 v[%d:%d], v3, s[28:31], s15 offen offset:%d" % (t + 8, t + 11, 1024 * u))
            else: a("buffer_store_dwordx2 v[%d:%d], v4, s[28:31], s38 offen" % (t + 8, t + 9))
        if j < 3:
            a("s_add_u32 s15, s15, %d" % HSTR)
            a("s_add_u32 s38, s38, %d" % HSTR)
    if v.get("stamps"): a("s_waitcnt vmcnt(0)")
    stamp(a, 7, v)
    stamps_out(a, v, 8, "L_b_st")
    a("s_endpgm")

def gen_k1(a, v, name="main_kernel"):
    kernel_head(a, name)
    a("s_cmp_ge_u32 s2, 256")
    a("s_cbranch_scc1 L_k1_end")
    stamp(a, 0, v)
    a("s_load_dwordx2 s[4:5], s[0:1], 24")
    a("s_load_dwordx2 s[6:7], s[0:1], 48")
    a("s_load_dwordx2 s[8:9], s[0:1], 96")
    a("v_and_b32 v1, 63, v0")
    a("v_lshrrev_b32 v2, 6, v0")
    a("s_and_b32 s11, s2, 7")
    a("v_readfirstlane_b32 s10, v2")
    a("s_lshr_b32 s12, s2, 3")
    a("s_and_b32 s13, s11, 1")
    a("s_lshl_b32 s13, s13, 2")
    a("s_and_b32 s14, s12, 3")
    a("s_add_u32 s13, s13, s14")
    a("s_lshr_b32 s14, s11, 1")
    a("s_lshl_b32 s14, s14, 2")
    a("s_bfe_u32 s15, s12, 0x20002")
    a("s_add_u32 s14, s14, s15")
    a("s_waitcnt lgkmcnt(0)")
    a("s_cmp_lt_u32 s12, 16")
    a("s_cbranch_scc1 L_k1_b")
    gen_a_path(a, v)
    a("L_k1_b:")
    gen_b_path(a, v)
    a("L_k1_end:")
    a("s_endpgm")
    return kernel_desc(name, 512, 102, 256), "; @launch kernel=%s grid=(256,1,1) block=(256,1,1) lds=%d" % (name, 163840)
```

```python
from asmlib import *
from k0 import *
from k1a import *
from k1b import ST_FLAGS, POLL_MAX
import math

PST = 1056
PSLOT = 8 * PST
WS_EX = WS_ST + (1 << 20)
ST_FLAG2 = ST_FLAGS + 2048
N1 = 88

def gen_stream(a, steps, R, lbl, inserts=None, v=None):
    FA = [16, 48]; FB0 = 80
    inserts = inserts or {}
    n = len(steps); D = R - 1
    def issue(s, loop):
        st = steps[s]; k = st["kind"]; slot = s % R; fb = FB0 + 8 * slot
        m0 = ["s_add_u32 m0, s38, %d" % (slot * PSLOT)] + ([] if loop else ["s_nop 0"])
        if k == "S":
            l = [m0, ["buffer_load_dwordx4 v4, s[16:19], s32 offen lds"],
                 ["buffer_load_dwordx4 v5, s[16:19], s32 offen offset:%d lds" % PST],
                 ["buffer_load_dwordx4 v[%d:%d], v10, s[20:23], s33 offen" % (fb, fb + 3), "s_add_u32 s32, s32, 0x10000"],
                 ["buffer_load_dwordx4 v[%d:%d], v10, s[20:23], s33 offen offset:256" % (fb + 4, fb + 7), "s_add_u32 s33, s33, 2048"]]
            cnt = 4
        else:
            u = st["u"]
            va, vb = ("v6", "v7") if k == "Y" else ("v8", "v9")
            rowb = lambda u: 32 * u if u < 3 else (112 + 32 * (u - 3) if u < 6 else 96)
            nxt = rowb(u + 1) - rowb(u) if u < 6 else 224 - 96
            l = [m0, ["buffer_load_dwordx4 %s, s[24:27], s34 offen lds" % va],
                 ["buffer_load_dwordx4 %s, s[24:27], s34 offen offset:%d lds" % (vb, PST),
                  ("s_add_u32 s34, s34, %d" % (nxt * 2048)) if nxt > 0 else ("s_sub_u32 s34, s34, %d" % (-nxt * 2048))]]
            if k == "Y":
                l += [["buffer_load_dwordx4 v[%d:%d], v11, s[28:31], s35 offen" % (fb, fb + 3), "s_add_u32 s35, s35, 1024"],
                      ["buffer_load_dwordx4 v[%d:%d], v11, s[28:31], s36 offen" % (fb + 4, fb + 7), "s_add_u32 s36, s36, 1024"]]
                cnt = 4
            else:
                l += [["buffer_load_dwordx2 v[%d:%d], v12, s[28:31], s35 offen" % (fb, fb + 1),
                       "buffer_load_dwordx2 v[%d:%d], v12, s[28:31], s35 offen offset:512" % (fb + 2, fb + 3), "s_add_u32 s35, s35, 1024"],
                      ["buffer_load_dwordx2 v[%d:%d], v12, s[28:31], s36 offen" % (fb + 4, fb + 5),
                       "buffer_load_dwordx2 v[%d:%d], v12, s[28:31], s36 offen offset:512" % (fb + 6, fb + 7), "s_add_u32 s36, s36, 1024"]]
                cnt = 6
        return l, cnt
    def reads(s):
        slot = s % R; st = s & 1
        va, off = ("v13", slot * PSLOT) if slot < 7 else ("v14", (slot - 7) * PSLOT)
        return ["ds_read_b64_tr_b16 v[%d:%d], %s offset:%d" % (FA[st] + 4 * i + 2 * sec, FA[st] + 4 * i + 2 * sec + 1, va,
                off + sec * 256 + i * 32) for i in range(8) for sec in range(2)]
    if v and (v.get("frzW") or v.get("frzB")):
        _issue = issue
        def issue(s, loop):
            l, c = _issue(s, loop)
            bad = (["s32", "s34"] if v.get("frzW") else []) + (["s33", "s35", "s36"] if v.get("frzB") else [])
            l = [[x for x in g if not (x.startswith("s_add_u32") or x.startswith("s_sub_u32")) or x.split()[1].rstrip(",") not in bad] for g in l]
            return l, c
    seq = []
    for s in range(D):
        l, c = issue(s, False); a.ext(flat(l)); seq += [s] * c
    def wait_for(smax):
        idx = [i for i, t in enumerate(seq) if t is not None and t <= smax]
        return min(63, len(seq) - 1 - max(idx))
    pro = inserts.get("pro")
    if pro: pro(a)
    a("s_waitcnt vmcnt(%d)" % wait_for(0))
    a("s_barrier")
    a.ext(reads(0))
    if v: stamp(a, 1, v)
    bodies = []; cur = []
    for s in range(n):
        st = steps[s]
        if s in inserts:
            lines, nv = inserts[s]
            cur += lines; seq += [None] * nv
        if s % 2 == 0:
            cur.append("s_waitcnt vmcnt(%d) lgkmcnt(0)" % wait_for(min(s + 2, n - 1)))
            if s + 1 < n: cur.append("s_barrier")
        else:
            cur.append("s_waitcnt lgkmcnt(0)")
        f = {}
        if s + 1 < n: f = spread(reads(s + 1), [0, 0, 1, 1, 2, 2, 3, 4, 5, 6, 7, 8, 9, 10, 11, 12])
        if s + D < n:
            l, c = issue(s + D, True); seq += [s + D] * c
            f = merge(f, spread(l, [3, 5, 8, 11, 13]))
        if st.get("extra"): f = merge(f, st["extra"])
        fb = FB0 + 8 * (s % R)
        mf = [mf16(st["acc"] + (i * 2 + j) * 4, vr(FA[s & 1] + 4 * i, 4), vr(fb + 4 * j, 4), "0" if st.get("first") else None)
              for i, j in zig(8, 2)]
        cur += interleave(mf, f)
        if (s + 1) % R == 0 or s == n - 1:
            bodies.append(cur); cur = []
    roll(a, [ablate(b, v or {}, "abP") for b in bodies], lbl)

def gen_k2(a, v, name="final_kernel"):
    n1 = v.get("n1", N1)
    kernel_head(a, name)
    a("s_cmp_ge_u32 s2, 256")
    a("s_cbranch_scc1 L_k2_end")
    stamp(a, 0, v)
    a("s_load_dwordx2 s[4:5], s[0:1], 32")
    a("s_load_dwordx4 s[40:43], s[0:1], 72")
    a("s_load_dwordx2 s[6:7], s[0:1], 0")
    a("s_load_dwordx2 s[8:9], s[0:1], 96")
    a("v_and_b32 v1, 63, v0")
    a("v_lshrrev_b32 v2, 6, v0")
    a("s_and_b32 s11, s2, 7")
    a("v_readfirstlane_b32 s10, v2")
    a("s_lshr_b32 s12, s2, 3")
    if v.get("xsep"):
        a("s_and_b32 s13, s11, 1")
        a("s_lshl_b32 s13, s13, 3")
        a("s_and_b32 s15, s12, 7")
        a("s_add_u32 s13, s13, s15")
        a("s_bfe_u32 s14, s11, 0x10001")
        a("s_lshl_b32 s14, s14, 2")
        a("s_lshr_b32 s15, s12, 3")
        a("s_add_u32 s14, s14, s15")
        a("s_lshr_b32 s54, s11, 2")
    else:
        a("s_lshr_b32 s13, s11, 1")
        a("s_lshl_b32 s13, s13, 2")
        a("s_and_b32 s15, s12, 3")
        a("s_add_u32 s13, s13, s15")
        a("s_and_b32 s14, s11, 1")
        a("s_lshl_b32 s14, s14, 2")
        a("s_bfe_u32 s15, s12, 0x20002")
        a("s_add_u32 s14, s14, s15")
        a("s_lshr_b32 s54, s2, 7")
    a("v_and_b32 v3, 15, v1")
    a("v_lshlrev_b32 v15, 4, v3")
    a("s_lshl_b32 s15, s14, 8")
    a("v_add_u32 v15, s15, v15")
    a("v_and_b32 v3, 1, v2")
    a("v_lshl_add_u32 v15, v3, 12, v15")
    a("v_lshrrev_b32 v16, 5, v1")
    a("v_bfe_u32 v17, v1, 4, 1")
    a("v_lshrrev_b32 v18, 1, v2")
    a("v_lshl_add_u32 v4, v16, 15, v15")
    a("v_lshl_add_u32 v4, v18, 14, v4")
    a("v_lshl_add_u32 v4, v17, 13, v4")
    a("v_add_u32 v5, %d, v4" % (2048 - PST))
    a("v_lshl_add_u32 v8, v16, 14, v15")
    a("v_lshl_add_u32 v8, v18, 13, v8")
    a("v_lshl_add_u32 v6, v17, 15, v8")
    a("v_add_u32 v7, %d, v6" % (2048 - PST))
    a("v_mul_u32_u24 v3, %d, v17" % (112 * 2048))
    a("v_add_u32 v8, v8, v3")
    a("v_add_u32 v9, %d, v8" % (2048 - PST))
    a("v_and_b32 v10, 15, v1")
    a("v_lshlrev_b32 v10, 4, v10")
    a("v_lshrrev_b32 v3, 4, v1")
    a("v_lshl_add_u32 v10, v3, 9, v10")
    a("v_lshlrev_b32 v11, 4, v1")
    a("v_lshlrev_b32 v12, 3, v1")
    a("v_bfe_u32 v3, v1, 2, 3")
    a("v_mul_u32_u24 v13, %d, v3" % PST)
    a("v_lshl_add_u32 v13, v16, 9, v13")
    a("v_and_b32 v3, 3, v1")
    a("v_lshl_add_u32 v13, v3, 3, v13")
    a("v_add_u32 v14, %d, v13" % (7 * PSLOT))
    a("s_mul_i32 s38, s10, %d" % (2 * PST))
    a("s_waitcnt lgkmcnt(0)")
    srd(a, 16, 4, 4096 * 1024 * 2)
    srd(a, 20, 8, 64 * OSTR, WS_O)
    srd(a, 24, 40, 1792 * 1024 * 2)
    srd(a, 28, 8, 128 * HSTR, WS_H)
    srd(a, 44, 8, 128 * 4 * 16384, WS_EX)
    srd(a, 48, 8, 2048, ST_FLAG2)
    a("s_lshl_b32 s15, s13, 2")
    a("s_add_u32 s15, s15, s10")
    a("s_mul_i32 s33, s15, %d" % OSTR)
    a("s_mul_i32 s35, s15, %d" % (2 * HSTR))
    a("s_add_u32 s36, s35, %d" % HSTR)
    a("s_mov_b32 s34, 0")
    a("s_lshl_b32 s39, s13, 3")
    a("s_add_u32 s39, s39, s14")
    a("s_lshl_b32 s39, s39, 2")
    a("s_add_u32 s39, s39, s10")
    a("s_lshl_b32 s52, s39, 14")
    a("s_lshl_b32 s53, s39, 2")
    a("s_cmp_lg_u32 s54, 0")
    a("s_cbranch_scc1 L_k2_t2")
    a("s_mov_b32 s32, 0")
    steps = [dict(kind="S", acc=0, first=(s == 0)) for s in range(n1)]
    gen_stream(a, steps, v.get("r1", 14), "L_k2_a", None, v)
    stamp(a, 2, v)
    a("v_mov_b32 v3, 0")
    a("v_mov_b32 v4, 1")
    a("s_nop 5")
    for p in range(16):
        a("buffer_store_dwordx4 a[%d:%d], v11, s[44:47], s52 offen offset:%d sc1" % (4 * p, 4 * p + 3, 1024 * (p & 3)))
        if p & 3 == 3: a("s_add_u32 s52, s52, 4096")
    a("s_waitcnt vmcnt(0)")
    a("s_mov_b64 exec, 1")
    a("buffer_store_dword v4, v3, s[48:51], s53 offen sc1")
    a("s_mov_b64 exec, -1")
    stamp(a, 3, v)
    stamps_out(a, v, 4, "L_k2_st2", 49)
    a("s_endpgm")
    a("L_k2_t2:")
    a("s_mov_b32 s32, %d" % (n1 * 32 * 2048))
    a("s_add_u32 s33, s33, %d" % (n1 * 2048))
    a("s_mov_b32 s60, 0x%x" % f2u(-math.log2(math.e)))
    ns = 128 - n1
    GT = 192
    steps = [dict(kind="Y" if s % 7 < 6 else "YS", u=s % 7, acc=0, first=(s == 0)) for s in range(56)]
    steps += [dict(kind="S", acc=64, first=(s == 0)) for s in range(ns)]
    for q in range(32):
        x0, x1 = GT + 2 * q, GT + 2 * q + 1
        ex = {4: ["v_accvgpr_read_b32 v%d, a%d" % (x0, 2 * q)], 6: ["v_accvgpr_read_b32 v%d, a%d" % (x1, 2 * q + 1)],
              7: ["v_mul_f32 v2, s60, v%d" % x0], 9: ["v_mul_f32 v3, s60, v%d" % x1], 10: ["v_exp_f32 v2, v2"],
              12: ["v_exp_f32 v3, v3"], 13: ["v_add_f32 v2, 1.0, v2"], 14: ["v_add_f32 v3, 1.0, v3", "v_rcp_f32 v2, v2"],
              15: ["v_rcp_f32 v3, v3", "v_mul_f32 v%d, v%d, v2" % (x0, x0), "v_mul_f32 v%d, v%d, v3" % (x1, x1)]}
        steps[57 + q]["extra"] = ex
    gen_stream(a, steps, v.get("r2", 14), "L_k2_b", None, v)
    stamp(a, 2, v)
    srd(a, 16, 6, 2048 * 1024 * 2)
    srd(a, 20, 42, 2048 * 1024 * 2)
    a("v_and_b32 v6, 15, v1")
    a("v_lshrrev_b32 v7, 4, v1")
    a("v_lshlrev_b32 v5, 11, v7")
    a("v_lshl_add_u32 v5, v6, 4, v5")
    a("s_lshl_b32 s15, s13, 2")
    a("s_add_u32 s15, s15, s10")
    a("s_lshl_b32 s15, s15, 16")
    a("s_lshl_b32 s34, s14, 8")
    a("s_add_u32 s34, s34, s15")
    XR, XF, SP, AG = 144, 16, 80, 144
    a("s_mov_b32 s35, s34")
    for q in range(8):
        a("buffer_load_dwordx4 v[%d:%d], v5, s[16:19], s35 offen" % (XR + 4 * q, XR + 4 * q + 3))
        a("s_add_u32 s35, s35, 8192")
    a("s_mul_i32 s36, s10, 16896")
    a("v_mul_u32_u24 v8, 528, v6")
    a("v_lshl_add_u32 v8, v7, 4, v8")
    a("v_add_u32 v8, s36, v8")
    a("v_mul_u32_u24 v9, 528, v7")
    a("v_lshl_add_u32 v9, v6, 5, v9")
    a("v_add_u32 v9, s36, v9")
    a("s_waitcnt vmcnt(0)")
    for r in range(32):
        a("v_lshlrev_b32 v%d, 16, v%d" % (XF + 2 * r, XR + r))
        a("v_and_b32 v%d, 0xffff0000, v%d" % (XF + 2 * r + 1, XR + r))
    a("v_mov_b32 v3, 0")
    a("s_mov_b32 s37, 0")
    a("s_barrier")
    a("L_k2_poll:")
    a("buffer_load_dword v4, v3, s[48:51], s53 offen sc1")
    a("s_waitcnt vmcnt(0)")
    a("v_cmp_ne_u32 vcc, 1, v4")
    a("s_add_u32 s37, s37, 1")
    a("s_cmp_ge_u32 s37, %d" % POLL_MAX)
    a("s_cbranch_scc1 L_k2_poll_done")
    a("s_cbranch_vccnz L_k2_poll")
    a("L_k2_poll_done:")
    stamp(a, 3, v)
    for p in range(16):
        a("buffer_load_dwordx4 v[%d:%d], v11, s[44:47], s52 offen offset:%d sc1" % (SP + 4 * p, SP + 4 * p + 3, 1024 * (p & 3)))
        if p & 3 == 3: a("s_add_u32 s52, s52, 4096")
    P2 = lambda r: "v[%d:%d]" % (r, r + 1)
    for p in range(16):
        t = AG + 4 * (p & 7)
        for e in range(4): a("v_accvgpr_read_b32 v%d, a%d" % (t + e, 64 + 4 * p + e))
        a("s_waitcnt vmcnt(%d)" % (15 - p))
        for h in (0, 2): a("v_pk_add_f32 %s, %s, %s" % (P2(t + h), P2(t + h), P2(SP + 4 * p + h)))
        for h in (0, 2): a("v_pk_mul_f32 %s, %s, %s" % (P2(t + h), P2(t + h), P2(GT + 4 * p + h)))
        i, j = p >> 1, p & 1
        a("ds_write_b128 v8, v[%d:%d] offset:%d" % (t, t + 3, j * 16 * 528 + i * 64))
    a("s_waitcnt lgkmcnt(0)")
    for q in range(8):
        for h in range(2):
            a("ds_read_b128 v[%d:%d], v9 offset:%d" % (SP + 8 * q + 4 * h, SP + 8 * q + 4 * h + 3, q * 4 * 528 + 16 * h))
    for q in range(8):
        a("s_waitcnt lgkmcnt(%d)" % min(15, 14 - 2 * q))
        t = SP + 8 * q
        for r in range(4): a("v_pk_add_f32 %s, %s, %s" % (P2(t + 2 * r), P2(t + 2 * r), P2(XF + 8 * q + 2 * r)))
        for r in range(4): a("v_cvt_pk_bf16_f32 v%d, v%d, v%d" % (AG + 4 * q + r, t + 2 * r, t + 2 * r + 1))
        a("buffer_store_dwordx4 v[%d:%d], v5, s[20:23], s34 offen" % (AG + 4 * q, AG + 4 * q + 3))
        if q < 7: a("s_add_u32 s34, s34, 8192")
    if v.get("stamps"): a("s_waitcnt vmcnt(0)")
    stamp(a, 4, v)
    stamps_out(a, v, 5, "L_k2_st1", 49)
    a("L_k2_end:")
    a("s_endpgm")
    return kernel_desc(name, 384, 100, 256), "; @launch kernel=%s grid=(256,1,1) block=(256,1,1) lds=%d" % (name, 14 * PSLOT)
```

```python
import sys
from asmlib import *
from k0 import *
from k1a import *
from k1b import *
from k2 import *
HDR = open("recurrent_scan__sliding_block_cached__mixer_gmlp__prompt.s.ref").read().split("; Override")[0]
def build(path, v=None):
    v = v or {}
    a = Asm()
    d0, l0 = gen_k0(a, v)
    d1, l1 = gen_k1(a, v)
    d2, l2 = gen_k2(a, v)
    a("L_code_end:")
    txt = HDR + l0 + "\n" + l1 + "\n" + l2 + "\n" + '.amdgcn_target "amdgcn-amd-amdhsa--gfx950"\n.text\n' + a.text()
    txt += '.section .rodata,"a"\n.p2align 6\n' + d0 + ".p2align 6\n" + d1 + ".p2align 6\n" + d2
    open(path, "w").write(txt)
if __name__ == "__main__":
    o = dict(pf1=True, pf3=True, n1=92, r1=8, r2=8, pre=3, cpf=True, rz=4, rq=4, pfa=1)
    build("i0.s", dict(o))
```
